```python
import torch

def _softmax(x, axis=-1):
    return torch.softmax(x, dim=axis)
def _gelu(x):
    return torch.nn.functional.gelu(x, approximate="tanh")
def _silu(x):
    return torch.nn.functional.silu(x)
def _sigmoid(x):
    return torch.sigmoid(x)
def _layernorm(x, axis=-1, eps=1e-5):
    m = x.mean(dim=axis, keepdim=True)
    v = x.var(dim=axis, keepdim=True, unbiased=False)
    return (x - m) / torch.sqrt(v + eps)
def _scatter_add(tgt, idx, src, axis=0):
    return tgt.clone().index_add_(axis, idx, src)
def _segment_sum(src, seg, n):
    out = torch.zeros((n,) + src.shape[1:], dtype=src.dtype)
    return out.index_add_(0, seg, src)
def _pad(x, pw):
    flat = tuple(v for pair in reversed(pw) for v in pair)
    return torch.nn.functional.pad(x, flat)

kernel_name = 'recurrent_scan__sliding_block_cached__glu_gated_glu__prompt'

def setup_inputs():

    _w = (lambda a: (lambda t: t.to(torch.bfloat16) if t.is_floating_point() else t)(torch.as_tensor(a)))
    def _A_setup():
        B, Sq, D = 1, 2048, 1024
        Hq, Hkv, Sk, Dh = 32, 4, 2048, 128
        assert Hq % Hkv == 0, (Hq, Hkv)
        return {
            "x": _w((lambda *s: torch.randn(*s, dtype=torch.bfloat16) * 0.05)(B, Sq, D)),
            "k_cache": _w((lambda *s: torch.randn(*s, dtype=torch.bfloat16) * 0.8)(B, Hkv, Sk, Dh)),
            "v_cache": _w((lambda *s: torch.randn(*s, dtype=torch.bfloat16) * 0.2)(B, Hkv, Sk, Dh)),
            "wq": _w((lambda *s: torch.randn(*s, dtype=torch.bfloat16) * 0.8)(D, Hq * Dh) * (D ** -0.5)),
            "wo": _w((lambda *s: torch.randn(*s, dtype=torch.bfloat16) * 0.2)(Hq * Dh, D) * ((Hq * Dh) ** -0.5)),
        }
    _A_in = _A_setup()

    def _B_setup():
        B, S, D, F = 1, 2048, 1024, 3584
        return {
            "x": _w((lambda *s: torch.randn(*s, dtype=torch.bfloat16) * 0.05)(B, S, D)),
            "w_gate": _w((lambda *s: torch.randn(*s, dtype=torch.bfloat16) * 0.2)(D, F)),
            "w_up": _w((lambda *s: torch.randn(*s, dtype=torch.bfloat16) * 0.1)(D, F)),
            "w_down": _w((lambda *s: torch.randn(*s, dtype=torch.bfloat16) * 0.1)(F, D)),
        }
    _B_in = _B_setup()

    return {
        "A_x": _A_in["x"],
        "A_k_cache": _A_in["k_cache"],
        "A_v_cache": _A_in["v_cache"],
        "A_wq": _A_in["wq"],
        "A_wo": _A_in["wo"],
        "B_x": _B_in["x"],
        "B_w_gate": _B_in["w_gate"],
        "B_w_up": _B_in["w_up"],
        "B_w_down": _B_in["w_down"],
    }

def reference(A_x, A_k_cache, A_v_cache, A_wq, A_wo, B_x, B_w_gate, B_w_up, B_w_down):
    def _A_ref(x, k_cache, v_cache, wq, wo):
        B, Sq, D = x.shape
        Hq, Dh = 32, 128
        Hkv, Sk = k_cache.shape[1], k_cache.shape[2]
        W = min(4096, max(256, Sk // 4))
        rep = Hq // Hkv
        q = (lambda x, *d: x.permute(*d))((x @ wq).reshape(B, Sq, Hq, Dh), 0, 2, 1, 3)
        k = (lambda x, n, axis: torch.repeat_interleave(x, n, dim=axis))(k_cache[:, :, Sk - W:, :], rep, axis=1)
        v = (lambda x, n, axis: torch.repeat_interleave(x, n, dim=axis))(v_cache[:, :, Sk - W:, :], rep, axis=1)
        scores = torch.einsum("bhqd,bhkd->bhqk", q, k) * (Dh ** -0.5)
        p = _softmax(scores, axis=-1)
        o = torch.einsum("bhqk,bhkd->bhqd", p, v)
        return (lambda x, *d: x.permute(*d))(o, 0, 2, 1, 3).reshape(B, Sq, Hq * Dh) @ wo

    def _B_ref(x, w_gate, w_up, w_down):
        g = torch.einsum("bsd,df->bsf", x, w_gate)
        u = torch.einsum("bsd,df->bsf", x, w_up)
        h = _sigmoid(g) * u
        return torch.einsum("bsf,fd->bsd", h, w_down)

    x = A_x
    xn = _layernorm(x, axis=-1)
    s = _A_ref(xn, A_k_cache, A_v_cache, A_wq, A_wo)
    g = _silu(_B_ref(xn, B_w_gate, B_w_up, B_w_down))
    return x + s * g
```

```python
import re

REG_RE = re.compile(r'^(-|\|)?(v|a|s)(\d+)\|?$')
RNG_RE = re.compile(r'^(-|\|)?(v|a|s)\[(\d+):(\d+)\]\|?$')

def regs_of(tok):
    tok = tok.strip()
    if tok.startswith('abs(') or tok.startswith('neg('):
        tok = tok[4:-1]
    m = REG_RE.match(tok)
    if m: return [(m.group(2), int(m.group(3)))]
    m = RNG_RE.match(tok)
    if m: return [(m.group(2), i) for i in range(int(m.group(3)), int(m.group(4)) + 1)]
    if tok in ('vcc', 'vcc_lo', 'vcc_hi'): return [('s', 'vcc')]
    if tok == 'exec': return [('s', 'exec')]
    if tok == 'm0': return [('s', 'm0')]
    return []

def split_ops(s):
    out, depth, cur = [], 0, ''
    for ch in s:
        if ch in '[(': depth += 1
        if ch in '])': depth -= 1
        if ch == ',' and depth == 0:
            out.append(cur.strip()); cur = ''
        else:
            cur += ch
    if cur.strip(): out.append(cur.strip())
    return out

TRANS = ('v_exp_f32', 'v_log_f32', 'v_rcp_f32', 'v_rsq_f32', 'v_sqrt_f32', 'v_sin_f32', 'v_cos_f32')

class Inst:
    __slots__ = ('text', 'mn', 'rd', 'wr', 'cls', 'tag', 'needs', 'wait', 'pad', 'rdA', 'rdC', 'note', 'slot')
    def __init__(self, text, tag=None, needs=None, slot=None, rdx=None):
        self.text = text
        self.tag = tag
        self.needs = needs
        self.slot = slot
        self.wait = {}
        self.pad = 0
        t = text.split(';')[0].strip()
        parts = t.split(None, 1)
        self.mn = mn = parts[0]
        rest = parts[1] if len(parts) > 1 else ''
        ops = split_ops(rest)
        mods = ''
        if ops:
            last = ops[-1].split()
            if len(last) > 1:
                ops[-1] = last[0]; mods = ' '.join(last[1:])
        R = lambda i: regs_of(ops[i]) if i < len(ops) else []
        allr = lambda a: [r for i in range(a, len(ops)) for r in regs_of(ops[i])]
        rd, wr = [], []
        self.rdA = []; self.rdC = []
        cls = 'other'
        if mn.startswith('v_mfma'):
            cls = 'mfma'; wr = R(0); self.rdA = R(1) + R(2); self.rdC = R(3); rd = self.rdA + self.rdC
        elif mn.startswith('ds_read') or mn.startswith('ds_bpermute') or mn.startswith('ds_swizzle'):
            cls = 'lds'; wr = R(0); rd = allr(1)
        elif mn.startswith('ds_write') or mn.startswith('ds_or') or mn.startswith('ds_add'):
            cls = 'lds'; rd = allr(0)
        elif mn.startswith('buffer_load') or mn.startswith('global_load'):
            cls = 'vmem'
            if re.search(r'\blds\b', mods): rd = allr(0) + [('s', 'm0')]; cls = 'dma'
            else: wr = R(0); rd = allr(1)
        elif mn.startswith('buffer_store') or mn.startswith('global_store'):
            cls = 'store'; rd = allr(0)
        elif mn.startswith('buffer_atomic') or mn.startswith('global_atomic'):
            cls = 'vmem'; rd = allr(0)
            if re.search(r'\bsc0\b', mods): wr = R(0)
        elif mn.startswith('buffer_wbl2') or mn.startswith('buffer_inv'):
            cls = 'store'
        elif mn.startswith('s_load') or mn.startswith('s_memtime') or mn.startswith('s_memrealtime'):
            cls = 'smem'; wr = R(0); rd = allr(1)
        elif mn.startswith('v_permlane') and 'swap' in mn:
            cls = 'valu'; rd = R(0) + R(1); wr = R(0) + R(1)
        elif mn.startswith('v_cmp'):
            cls = 'valu'; wr = R(0); rd = allr(1)
        elif mn in ('v_fmac_f32', 'v_pk_fmac_f16', 'v_dot2c_f32_bf16'):
            cls = 'valu'; wr = R(0); rd = allr(0)
        elif mn.startswith('v_cndmask'):
            cls = 'valu'; wr = R(0); rd = allr(1)
        elif mn.startswith('v_add_co') or mn.startswith('v_sub_co') or mn.startswith('v_addc_co'):
            cls = 'valu'; wr = R(0) + R(1); rd = allr(2)
        elif mn.startswith('v_writelane'):
            cls = 'valu'; wr = R(0); rd = allr(0)
        elif mn.startswith('v_'):
            cls = 'valu'; wr = R(0); rd = allr(1)
        elif mn.startswith('s_cmp') or mn.startswith('s_bitcmp'):
            cls = 'salu'; rd = allr(0)
        elif mn in ('s_waitcnt', 's_barrier', 's_nop', 's_branch', 's_endpgm', 's_setprio', 's_sleep') or mn.startswith('s_cbranch'):
            cls = 'ctl'
        elif mn.startswith('s_and_saveexec') or mn.startswith('s_or_saveexec'):
            cls = 'salu'; wr = R(0) + [('s', 'exec')]; rd = allr(1) + [('s', 'exec')]
        elif mn.startswith('s_'):
            cls = 'salu'; wr = R(0); rd = allr(1)
            if mn in ('s_addk_i32', 's_mulk_i32'): rd += R(0)
        elif mn.endswith(':') or mn.startswith('.'):
            cls = 'label'
        self.cls = cls
        self.rd = set(rd); self.wr = set(wr)
        if rdx: self.rd |= set(regs_of(rdx))
    def passes(self):
        return 8 if '32x32x16' in self.mn else 4
    def states(self):
        if self.cls == 'label': return 0
        if self.mn == 's_nop': return int(self.text.split()[1]) + 1
        return 1

class Loop:
    def __init__(self, count, body): self.count = count; self.body = body

class Prog:
    def __init__(self):
        self.items = []
        self.stack = [self.items]
    def e(self, text, **kw):
        for line in text.split('\n'):
            line = line.strip()
            if not line: continue
            i = Inst(line, **kw)
            self.stack[-1].append(i)
        return i
    def add(self, inst): self.stack[-1].append(inst)
    def loop_begin(self, count):
        l = Loop(count, [])
        self.stack[-1].append(l); self.stack.append(l.body)
    def loop_end(self): self.stack.pop()
    def trace(self, items=None, maxrep=None):
        for it in (self.items if items is None else items):
            if isinstance(it, Loop):
                n = it.count if maxrep is None else min(it.count, maxrep)
                for k in range(n):
                    for x in self.trace(it.body, maxrep): yield (x[0], (k,) + x[1])
            else:
                yield (it, ())
    def flat(self, items=None):
        for it in (self.items if items is None else items):
            if isinstance(it, Loop):
                yield from self.flat(it.body)
            else: yield it

    def solve_waits(self, tagfn=None):
        def res(t, it):
            return t(*it) if callable(t) else t
        for rnd in range(6):
            changed = False
            vm, lg = [], []
            smem_out = False
            for inst, it in self.trace():
                need_vm, need_lg = None, None
                touched = inst.rd | inst.wr
                if inst.mn == 's_waitcnt':
                    m = re.search(r'vmcnt\((\d+)\)', inst.text)
                    if m: n = int(m.group(1)); vm = vm[len(vm) - n:] if n < len(vm) else vm
                    if m and n == 0: vm = []
                    m = re.search(r'lgkmcnt\((\d+)\)', inst.text)
                    if m:
                        n = int(m.group(1)); lg = lg[len(lg) - n:] if n < len(lg) else lg
                        if n == 0: lg = []
                    continue
                def apply():
                    nonlocal vm, lg
                    if 'vm' in inst.wait:
                        n = inst.wait['vm']; vm = vm[len(vm) - n:] if (n < len(vm) and n > 0) else ([] if n == 0 else vm)
                    if 'lgkm' in inst.wait:
                        n = inst.wait['lgkm']; lg = lg[len(lg) - n:] if (n < len(lg) and n > 0) else ([] if n == 0 else lg)
                apply()
                for idx, (pi, wr, tg) in enumerate(vm):
                    hit = bool(wr & touched)
                    if inst.needs is not None and tg is not None:
                        nd = res(inst.needs, it)
                        if tg in nd: hit = True
                    if hit: need_vm = len(vm) - 1 - idx
                for idx, (pi, wr, tg) in enumerate(lg):
                    hit = bool(wr & touched)
                    if hit:
                        need_lg = len(lg) - 1 - idx
                        if any(p.cls == 'smem' for p, _, _ in lg): need_lg = 0
                if need_vm is not None:
                    need_vm = min(need_vm, 63)
                    inst.wait['vm'] = min(inst.wait.get('vm', 99), need_vm); changed = True
                if need_lg is not None:
                    need_lg = min(need_lg, 15)
                    inst.wait['lgkm'] = min(inst.wait.get('lgkm', 99), need_lg); changed = True
                apply()
                if inst.cls in ('vmem', 'store'): vm.append((inst, inst.wr, res(inst.tag, it) if inst.tag is not None else None))
                elif inst.cls == 'dma': vm.append((inst, set(), res(inst.tag, it)))
                elif inst.cls in ('lds', 'smem'): lg.append((inst, inst.wr, None))
                assert len(vm) <= 63, "vmcnt overflow at " + inst.text
                if len(lg) > 15 and inst.cls == 'lds':
                    pass
            if not changed: return
        raise RuntimeError("wait solve did not converge")

    def check_dma(self):
        def res(t, it): return t(*it) if callable(t) else t
        vm = []; lg = []
        landed_own, visible = set(), set()
        pending = {}
        slot_tag = {}
        reads_out = {}
        reads_done_since_barrier = {}
        last_read_complete_epoch = {}
        epoch = 0
        def retire_vm(n):
            nonlocal vm
            while len(vm) > n:
                tg = vm.pop(0)
                if tg is not None:
                    pending[tg] -= 1
        def retire_lg(n):
            nonlocal lg
            while len(lg) > n:
                tg = lg.pop(0)
                if tg is not None: last_read_complete_epoch[tg] = epoch; reads_out[tg] -= 1
        errs = []
        for inst, it in self.trace():
            if inst.mn == 's_waitcnt':
                m = re.search(r'vmcnt\((\d+)\)', inst.text)
                if m: retire_vm(int(m.group(1)))
                m = re.search(r'lgkmcnt\((\d+)\)', inst.text)
                if m: retire_lg(int(m.group(1)))
                continue
            if 'vm' in inst.wait: retire_vm(inst.wait['vm'])
            if 'lgkm' in inst.wait: retire_lg(inst.wait['lgkm'])
            if inst.mn == 's_barrier':
                epoch += 1
                for tg, c in pending.items():
                    if c == 0: visible.add(tg)
                    else: visible.discard(tg)
            if inst.cls == 'dma':
                tg = res(inst.tag, it); sl = res(inst.slot, it)
                if not isinstance(sl, tuple): sl = (sl, sl + 1)
                for osl in list(slot_tag):
                    prev = slot_tag[osl]
                    if osl[0] < sl[1] and sl[0] < osl[1] and prev != tg:
                        if reads_out.get(prev, 0) > 0 or last_read_complete_epoch.get(prev, -1) >= epoch:
                            errs.append(f"WAR: DMA {tg} into slot {sl} while reads of {prev} not barrier-separated: {inst.text} it={it}")
                        if prev not in last_read_complete_epoch: errs.append(f"overwrite of never-read stage {prev} by {tg}")
                        del slot_tag[osl]
                slot_tag[sl] = tg
                pending[tg] = pending.get(tg, 0) + 1
                visible.discard(tg)
                vm.append(tg)
            elif inst.cls in ('vmem', 'store'): vm.append(None)
            elif inst.cls == 'lds':
                tg = res(inst.tag, it) if inst.tag is not None else None
                if tg is not None:
                    if tg not in visible: errs.append(f"RAW: read of {tg} not visible: {inst.text} it={it}")
                    if tg not in slot_tag.values(): errs.append(f"stale: {tg} overwritten: {inst.text} it={it}")
                    reads_out[tg] = reads_out.get(tg, 0) + 1
                lg.append(tg)
            elif inst.cls == 'smem': lg.append(None)
        return errs

    def solve_hazards(self):
        for rnd in range(4):
            changed = False
            hist = []
            pos = 0
            for inst, it in self.trace(maxrep=3):
                if inst.cls == 'label': continue
                pos += inst.pad + (1 if inst.wait else 0)
                need = 0
                for (p, ppos) in reversed(hist):
                    dist = pos - ppos
                    if dist > 24: break
                    req = hazard(p, inst)
                    if req > dist: need = max(need, req - dist)
                if need:
                    inst.pad += need; pos += need; changed = True
                pos += inst.states()
                hist.append((inst, pos))
                if len(hist) > 64: hist.pop(0)
            if not changed: return
    def text(self):
        out = []
        for inst in self.flat():
            w = inst.wait
            pad = inst.pad
            while pad > 0:
                n = min(pad, 16); out.append(f"s_nop {n-1}"); pad -= n
            if w:
                s = "s_waitcnt"
                if 'vm' in w: s += f" vmcnt({w['vm']})"
                if 'lgkm' in w: s += f" lgkmcnt({w['lgkm']})"
                out.append(s)
            out.append(inst.text.replace(", ", ","))
        return "\n".join(out)

def isv(r): return r[0] in ('v', 'a')

def hazard(p, c):
    req = 0
    pw_v = {r for r in p.wr if isv(r)}
    pw_s = {r for r in p.wr if r[0] == 's'}
    if p.cls == 'valu':
        if c.cls == 'mfma' and (pw_v & c.rd): req = max(req, 2)
        if c.mn.startswith('v_permlane') and (pw_v & c.rd): req = max(req, 2)
        if c.mn in ('v_readfirstlane_b32', 'v_readlane_b32') and (pw_v & c.rd): req = max(req, 1)
        if p.mn in TRANS and c.cls == 'valu' and c.mn not in TRANS and (pw_v & c.rd): req = max(req, 1)
        if p.mn in TRANS and c.cls in ('valu',) and (pw_v & c.rd): req = max(req, 1)
        if pw_s:
            if c.cls in ('vmem', 'dma', 'store') and (pw_s & c.rd): req = max(req, 5)
            if c.cls == 'valu' and (pw_s & c.rd): req = max(req, 2 if not c.mn.startswith(('v_readlane', 'v_writelane')) else 4)
            if c.cls == 'salu' and (pw_s & c.rd): req = max(req, 1)
            if c.mn.startswith('s_cbranch_vcc') and ('s', 'vcc') in pw_s: req = max(req, 5)
            if ('s', 'exec') in pw_s and c.cls == 'mfma': req = max(req, 4)
        if 'dpp' in c.text or 'row_' in c.text or 'quad_perm' in c.text:
            if pw_v & c.rd: req = max(req, 2)
        if 'sdwa' in p.text or 'op_sel' in p.text:
            if c.cls == 'valu' and (pw_v & (c.rd | c.wr)): req = max(req, 1)
    if p.cls == 'salu':
        if ('s', 'm0') in p.wr and (c.cls == 'dma' or ('s', 'm0') in c.rd): req = max(req, 1)
    if p.cls == 'mfma':
        n = p.passes()
        big = {4: 8, 8: 12}[n]; ovl = {4: 6, 8: 10}[n]; war = {4: 3, 8: 7}[n]
        if c.cls == 'mfma':
            if p.wr & set(c.rdA): req = max(req, big)
            if p.wr & set(c.rdC):
                if not (set(c.rdC) == p.wr and c.passes() == n): req = max(req, ovl)
            elif p.wr & c.wr: req = max(req, ovl)
        elif c.cls in ('valu', 'vmem', 'store', 'lds', 'dma'):
            if p.wr & (c.rd | c.wr): req = max(req, big)
            if c.cls == 'valu' and (set(p.rdC) & c.wr): req = max(req, war)
    if p.cls == 'store' and ('x4' in p.mn or 'x3' in p.mn):
        if c.cls in ('valu', 'lds', 'vmem', 'mfma') and ({r for r in p.rd if isv(r)} & c.wr): req = max(req, 2)
    return req

def interleave(P, mfmas, fillers, start=0):
    for i, m in enumerate(mfmas):
        if isinstance(m, tuple): P.e(m[0], **m[1])
        else: P.e(m)
        for f in fillers.get(i, []):
            if isinstance(f, tuple): P.e(f[0], **f[1])
            else: P.e(f)

def kd(name, vgpr, accum, sgpr=102):
    return f""".section .rodata,"a"
.p2align 6
.amdhsa_kernel {name}
  .amdhsa_next_free_vgpr {vgpr}
  .amdhsa_next_free_sgpr {sgpr}
  .amdhsa_accum_offset {accum}
  .amdhsa_group_segment_fixed_size 0
  .amdhsa_kernarg_size 96
  .amdhsa_user_sgpr_count 2
  .amdhsa_user_sgpr_kernarg_segment_ptr 1
  .amdhsa_system_sgpr_workgroup_id_x 1
.end_amdhsa_kernel
"""


def _cls_of(x):
    t = x[0] if isinstance(x, tuple) else x
    mn = t.split()[0]
    if mn.startswith('ds_') or mn.startswith('buffer_') or mn.startswith('global_'): return 'mem'
    if mn in TRANS: return 'trans'
    if mn.startswith('v_'): return 'valu'
    return 'salu'

class Gaps:
    def __init__(self, mfmas, big):
        self.mf = mfmas; self.big = big
        self.n = len(mfmas)
        self.mem = [[] for _ in range(self.n)]
        self.salu = [[] for _ in range(self.n)]
        self.valu = [[] for _ in range(self.n)]
        self.resv = [0] * self.n
        self.aa = False
        self.vmgap = 0
        self.prev_vm = -99
    def put(self, g, items):
        if not isinstance(items, list): items = [items]
        for x in items:
            c = _cls_of(x)
            (self.mem if c == 'mem' else self.salu if c == 'salu' else self.valu)[g].append(x)
    def vcost(self, g): return sum(2 if _cls_of(x) == 'trans' else 1 for x in self.valu[g])
    def vm_near(self, g):
        if g - self.prev_vm < self.vmgap: return True
        for h in range(max(0, g - self.vmgap + 1), min(self.n, g + self.vmgap)):
            if any((y[0] if isinstance(y, tuple) else y).startswith('buffer_') for y in self.mem[h]): return True
        return False
    def last_vm(self):
        for h in range(self.n - 1, -1, -1):
            if any((y[0] if isinstance(y, tuple) else y).startswith('buffer_') for y in self.mem[h]): return h - self.n
        return -99
    def room(self, g, x):
        c = _cls_of(x)
        if c == 'mem' and self.vmgap and (x[0] if isinstance(x, tuple) else x).startswith('buffer_') and self.vm_near(g): return False
        nm, ns, v = len(self.mem[g]), len(self.salu[g]) + self.resv[g], self.vcost(g)
        if self.big:
            if c in ('mem', 'salu'): return nm + ns < 2 or (nm + ns < 3 and v <= 3)
            k = 2 if c == 'trans' else 1
            return v + k <= (5 if nm + ns <= 1 else 4 if nm + ns <= 2 else 3)
        tot = nm + ns + v
        if c == 'mem': return nm == 0 and tot < 2
        if c == 'salu': return tot < 2
        if c == 'trans': return tot == 0
        if self.aa and v == 1 and tot == 1 and _cls_of(self.valu[g][0]) == 'valu': return True
        return v == 0 and tot < 2
    def stream(self, ops, g0=0, g1=None):
        g1 = self.n if g1 is None else g1
        g = g0; i = 0
        lastc = None
        busy = {}
        lastvm = -1
        while i < len(ops) and g < g1:
            x = ops[i]; d = 0
            if isinstance(x, tuple) and len(x) == 3: d = x[2]; x = (x[0], x[1])
            if d and lastc is not None and g < lastc[0] + d: g = lastc[0] + d; continue
            c = _cls_of(x)
            t = x[0] if isinstance(x, tuple) else x
            ins = Inst(t)
            rank = {'mem': 0, 'salu': 1, 'valu': 2, 'trans': 2}[c]
            if t.startswith('buffer_'):
                h = max(g + (1 if (lastc is not None and lastc[0] == g and lastc[1] > 0) else 0), lastvm + 1)
                while h < g1 and not self.room(h, x): h += 1
                if h >= g1: break
                self.put(h, x); lastvm = h
                for r in ins.rd: busy[r] = max(busy.get(r, -1), h)
                for r in ins.wr: busy[('W',) + r] = h
                i += 1; continue
            lim = max([busy.get(r, -1) + (1 if c != 'salu' else 0) for r in ins.wr] + [busy.get(('W',) + r, -2) + 1 for r in (ins.rd | ins.wr)] + [-1])
            if g < lim: g = lim; continue
            if lastc is not None and lastc[0] == g and rank < lastc[1]: g += 1; continue
            if self.room(g, x):
                self.put(g, x); lastc = (g, rank); i += 1
            else: g += 1
        return ops[i:]
    def spread(self, ops, g0, g1, phase=0.5):
        nv = sum(1 for x in ops if _cls_of(x) == 'mem')
        step = (g1 - g0) / max(nv, 1)
        k = 0; pendin = []
        last = g0 - 1
        for x in ops:
            if _cls_of(x) != 'mem':
                pendin.append(x); continue
            tgt = max(int(g0 + (k + phase) * step), last + 1, g0 + (1 if pendin else 0))
            while not self.room(tgt, x): tgt += 1
            assert tgt < self.n, "spread overflow"
            g = max(last, g0)
            for y in pendin:
                while g < tgt - 1 and not self.room(g, y): g += 1
                g = min(g, tgt - 1)
                self.put(g, y)
            pendin = []
            self.put(tgt, x); last = tgt; k += 1
        g = last
        for y in pendin:
            while g < self.n - 1 and not self.room(g, y): g += 1
            self.put(g, y)
    def emit(self, P):
        for i, m in enumerate(self.mf):
            if isinstance(m, tuple): P.e(m[0], **m[1])
            else: P.e(m)
            for f in self.mem[i] + self.salu[i] + self.valu[i]:
                if isinstance(f, tuple): P.e(f[0], **f[1])
                else: P.e(f)
```

```python
from asmfw import *
from layout import *
import struct, math

def f32(x): return struct.unpack('<I', struct.pack('<f', x))[0]
LOG2E = f32(math.log2(math.e))
NLOG2E = LOG2E ^ 0x80000000
QSCALE = f32(math.log2(math.e) / math.sqrt(128.0))
SLOT = 24576
NSLOT = 6
LDS_BYTES = 163840
def z_base(z): return (z % 10) * 16384
def z_rng(z): return (z_base(z), z_base(z) + 16384)
SPIN_MAX = 0x80000
OOB = 0x7ff00000
DROP = 0x30000

WS, WQ, GU, KS, VS, XS, WD, WO, OUT = 8, 12, 16, 20, 24, 28, 32, 36, 40
def R(b): return f"s[{b}:{b+3}]"
sW, sJ, sR, sQ, sTC, sN = 44, 45, 46, 47, 48, 49

def srd(P, d, lo, size):
    P.e(f"s_mov_b64 s[{d}:{d+1}], s[{lo}:{lo+1}]\ns_mov_b32 s{d+2}, {size:#x}\ns_mov_b32 s{d+3}, 0x20000")

def allsum2(P, regs, tmps):
    for m in ("quad_perm:[1,0,3,2]", "quad_perm:[2,3,0,1]", "row_half_mirror", "row_mirror"):
        for v in regs: P.e(f"v_add_f32 v{v}, v{v}, v{v} {m} row_mask:0xf bank_mask:0xf")
    for sw in ("v_permlane16_swap_b32", "v_permlane32_swap_b32"):
        for v, t in zip(regs, tmps): P.e(f"v_mov_b32 v{t}, v{v}")
        for v, t in zip(regs, tmps): P.e(f"{sw} v{v}, v{t}")
        for v, t in zip(regs, tmps): P.e(f"v_add_f32 v{v}, v{v}, v{t}")

def mixin(P, main, side, every):
    side = list(side)
    for n, x in enumerate(main):
        if n % every == 0 and side:
            for y in side.pop(0): P.e(y[0], **y[1])
        P.e(x) if isinstance(x, str) else P.e(x[0], **x[1])
    for g in side:
        for y in g: P.e(y[0], **y[1])

def groups(ops):
    out, cur = [], []
    for x in ops:
        cur.append(x)
        if x[0].startswith('buffer_'): out.append(cur); cur = []
    if cur: out[-1] += cur
    return out

def gen_mega(name="mega_kernel", stamps=False, opt=None):
    opt = opt or {}
    P = Prog()
    nstamp = [0]
    VST = 3
    P.stamp_names = []
    def stamp(label):
        if not stamps: return
        P.e(f"s_memtime s[98:99]\ns_waitcnt lgkmcnt(0)\nv_writelane_b32 v{VST}, s98, {nstamp[0]}")
        P.stamp_names.append(label); nstamp[0] += 1
    def emit_list(l):
        for x in l: P.e(x) if isinstance(x, str) else P.e(x[0], **x[1])
    QA, UA = 0, 128
    GA, XR, WR = 144, 80, 48
    VL16, VLN = 1, 2
    VX = 4
    VDQ, VDG, VDS = 5, 6, 7
    AP0, AP1, AS = 8, 9, 10
    VDK, VDV = 11, 12
    AK0, AK1, AV = 13, 14, 15
    LN0 = 16
    VH0, VH1, VO, VF = 20, 21, 22, 23
    TMP = 24
    VD = 32
    AW = 36
    MX = 44
    VNON, VPOLL = 46, 47
    QF, SB, PB, NM = 80, 144, 208, 48
    KVR = 128
    P.e(f"s_cmp_ge_u32 s2, 256\ns_cbranch_scc1 L_end")
    P.e("s_load_dwordx8 s[60:67], s[0:1], 0")
    P.e("s_load_dwordx2 s[70:71], s[0:1], 88")
    P.e("s_load_dwordx8 s[72:79], s[0:1], 48")
    P.e("s_load_dwordx2 s[68:69], s[0:1], 32")
    P.e("s_getpc_b64 s[4:5]\nL_pc:")
    if stamps:
        P.e(f"s_memrealtime s[96:97]\nv_mov_b32 v{VST}, 0")
        stamp("entry")
    P.e(f"v_lshrrev_b32 v24, 6, v0\nv_and_b32 v{VLN}, 63, v0\nv_lshlrev_b32 v{VL16}, 4, v{VLN}")
    P.e(f"v_readfirstlane_b32 s{sW}, v24")
    P.e("s_and_b32 s50, s2, 7\ns_lshr_b32 s51, s2, 3")
    P.e(f"s_and_b32 s{sR}, s50, 1\ns_lshl_b32 s{sR}, s{sR}, 2\ns_lshr_b32 s52, s51, 3\ns_add_u32 s{sR}, s{sR}, s52")
    P.e(f"s_lshr_b32 s{sQ}, s50, 1\ns_and_b32 s{sTC}, s51, 7\ns_lshl_b32 s{sJ}, s{sQ}, 3\ns_add_u32 s{sJ}, s{sJ}, s{sTC}")
    P.e(f"s_lshl_b32 s50, s{sR}, 8\ns_lshl_b32 s52, s{sJ}, 3\ns_add_u32 s50, s50, s52")
    P.e(f"s_lshl_b32 s52, s{sW}, 1\ns_add_u32 s52, s52, s50\ns_lshl_b32 s52, s52, 11")
    P.e(f"s_mov_b32 s{XS+2}, 0x400000\ns_mov_b32 s{XS+3}, 0x20000\ns_mov_b32 s{WS+2}, {WS_SIZE:#x}\ns_mov_b32 s{WS+3}, 0x20000")
    P.e("s_mov_b32 s6, L_code_end-L_pc\ns_mov_b32 s7, 0x20000\ns_lshl_b32 s51, s51, 15")
    P.e(f"v_lshlrev_b32 v25, 7, v0\nv_mov_b32 v28, 0\ns_lshl_b32 s53, s{sR}, 7\ns_add_u32 s54, s53, {FL_EPOCH:#x}")
    P.e("s_waitcnt lgkmcnt(0)")
    stamp("karg")
    P.e(f"s_mov_b64 s[{XS}:{XS+1}], s[60:61]\ns_mov_b64 s[{WS}:{WS+1}], s[70:71]")
    LX = 144
    for e in range(2):
        for i in range(2):
            P.e(f"buffer_load_dwordx4 v[{LX+e*8+4*i}:{LX+e*8+4*i+3}], v{VL16}, {R(XS)}, s52 offen offset:{e*2048+i*1024}")
    P.e(f"buffer_load_dword v29, v28, {R(WS)}, s54 offen sc1")
    P.e(f"buffer_load_dword v31, v25, s[4:7], s51 offen")
    srd(P, WQ, 66, 1024*4096*2)
    P.e(f"s_cmp_lt_u32 s{sW}, 2\ns_cselect_b32 s{GU}, s72, s74\ns_cselect_b32 s{GU+1}, s73, s75")
    P.e(f"s_mov_b32 s{GU+2}, {1024*3584*2:#x}\ns_mov_b32 s{GU+3}, 0x20000")
    P.e(f"v_lshrrev_b32 v25, 2, v{VLN}\nv_and_b32 v26, 3, v{VLN}")
    P.e(f"s_and_b32 s54, s{sW}, 1\ns_lshr_b32 s55, s{sW}, 1")
    P.e("s_lshl_b32 s56, s54, 4\nv_add_u32 v24, s56, v25")
    P.e(f"v_bfe_u32 v30, v{VLN}, 4, 1\nv_lshlrev_b32 v30, 1, v30\nv_xor_b32 v30, v30, v26\nv_lshlrev_b32 v30, 4, v30")
    P.e(f"v_lshl_add_u32 v{VDQ}, v24, 13, v30")
    P.e(f"s_lshl_b32 s56, s{sJ}, 8\ns_lshl_b32 s57, s55, 7\ns_add_u32 s56, s56, s57\nv_add_u32 v{VDQ}, s56, v{VDQ}")
    P.e("s_movk_i32 s58, 7168\nv_mul_lo_u32 v27, v24, s58")
    P.e(f"s_mul_i32 s56, s{sJ}, 224\ns_and_b32 s59, s{sJ}, 1\ns_lshl_b32 s57, s59, 5\ns_add_u32 s57, s57, s56")
    P.e(f"v_add3_u32 v{VDG}, v27, v30, s57")
    P.e(f"v_bfe_u32 v24, v{VLN}, 1, 4\ns_lshl_b32 s57, s54, 4\nv_add_u32 v24, s57, v24\nv_mul_lo_u32 v27, v24, s58")
    P.e(f"v_and_b32 v30, 1, v{VLN}\nv_lshlrev_b32 v30, 4, v30")
    P.e("s_cmp_eq_u32 s59, 0\ns_cselect_b32 s57, 192, 0\ns_add_u32 s57, s57, s56")
    P.e(f"v_add3_u32 v{VDS}, v27, v30, s57")
    P.e(f"v_mov_b32 v30, {OOB:#x}\nv_cmp_gt_u32 vcc, 32, v{VLN}\nv_cndmask_b32 v{VDS}, v30, v{VDS}, vcc")
    P.e(f"v_cmp_eq_u32 vcc, 0, v0\nv_cndmask_b32 v{VF}, v30, v28, vcc")
    P.e("s_lshl_b32 s80, s55, 12\ns_lshl_b32 s57, s54, 10\ns_add_u32 s80, s80, s57")
    P.e("s_lshl_b32 s81, s55, 13\ns_add_u32 s81, s81, 8192\ns_add_u32 s81, s81, s57\ns_add_u32 s82, s81, 6144")
    P.e(f"s_mov_b32 s83, 0\ns_mov_b32 s84, 0\ns_mov_b32 s85, {XN_OFF:#x}\ns_mov_b32 s86, 0\ns_mov_b32 s87, 0\ns_mov_b32 s90, 0xffff0000")
    def slot_adv():
        return [(f"s_add_u32 s86, s86, {SLOT}", {}), (f"s_cmp_eq_u32 s86, {SLOT*NSLOT}", {}), (f"s_cselect_b32 s86, 0, s86", {})]
    def wdma(tag, slot):
        kw = dict(tag=tag, slot=slot)
        g = [("s_add_u32 s88, s86, s80", {}), ("s_add_u32 s89, s86, s81", {})]
        for b in range(2):
            g += [(f"s_add_u32 m0, s88, {b*2048 - 64*b}", {}), (f"buffer_load_dwordx4 v{VDQ}, {R(WQ)}, s83 offen offset:{64*b} lds", kw)]
        for b in range(3):
            g += [(f"s_add_u32 m0, s89, {b*2048 - 64*b}", {}), (f"buffer_load_dwordx4 v{VDG}, {R(GU)}, s84 offen offset:{64*b} lds", kw)]
        g += [("s_add_u32 m0, s86, s82", {}), (f"buffer_load_dwordx4 v{VDS}, {R(GU)}, s84 offen lds", kw)]
        g += [("s_add_u32 s83, s83, 0x40000", {}), (f"s_add_u32 s84, s84, {32*7168:#x}", {})]
        return g
    def wrng(step): return ((step % NSLOT)*SLOT, (step % NSLOT)*SLOT + SLOT) if step < 32 else (DROP + step*SLOT, DROP + step*SLOT + SLOT)
    LNB = SLOT * NSLOT
    P.e(f"v_and_b32 v24, 1, v{VLN}\nv_and_b32 v27, 3, v25\nv_lshl_add_u32 v27, v24, 2, v27")
    P.e(f"s_lshl_b32 s57, s{sW}, 1\nv_xor_b32 v27, s57, v27")
    P.e(f"v_lshlrev_b32 v30, 9, v25\nv_lshl_add_u32 v30, v24, 8, v30\nv_bfe_u32 v24, v{VLN}, 1, 1\nv_lshl_add_u32 v30, v24, 3, v30")
    P.e(f"v_add_u32 v30, {LNB}, v30\nv_lshl_add_u32 v{AP0}, v27, 4, v30\nv_xor_b32 v{AP1}, 16, v{AP0}")
    P.e(f"v_lshlrev_b32 v{AS}, 4, v0\nv_add_u32 v{AS}, {LNB}, v{AS}")
    P.e("v_lshrrev_b32 v24, 5, v0\nv_bfe_u32 v27, v0, 3, 2\nv_and_b32 v30, 3, v24\nv_bfe_u32 v31, v0, 4, 1\nv_lshl_add_u32 v30, v31, 2, v30")
    P.e(f"v_and_b32 v31, 7, v0\nv_xor_b32 v30, v30, v31\nv_lshlrev_b32 v{VX}, 17, v24\nv_lshl_add_u32 v{VX}, v27, 8, v{VX}\nv_lshl_add_u32 v{VX}, v30, 4, v{VX}")
    P.e("s_lshr_b32 s51, s50, 4\ns_lshl_b32 s51, s51, 10\ns_and_b32 s56, s50, 15\ns_lshl_b32 s56, s56, 4\ns_add_u32 s51, s51, s56")
    if XN_OFF: P.e(f"s_add_u32 s51, s51, {XN_OFF:#x}")
    dm = []
    for st in range(4): dm += wdma(('W', st), wrng(st)) + slot_adv()
    dmg = groups(dm)
    for g in dmg[:6]: emit_list(g)
    stamp("issued")
    F = [176, 192]
    SM, VR, T1 = [208, 210], [212, 214], [216, 218]
    ln = []
    for e in range(2):
        for i in range(8): ln += [f"v_lshlrev_b32 v{F[e]+2*i}, 16, v{LX+e*8+i}", f"v_and_b32 v{F[e]+2*i+1}, s90, v{LX+e*8+i}"]
    pk = lambda r: f"v[{r}:{r+1}]"
    for e in range(2): ln.append(f"v_pk_add_f32 {pk(SM[e])}, {pk(F[e])}, {pk(F[e]+2)}")
    for i in range(2, 8):
        for e in range(2): ln.append(f"v_pk_add_f32 {pk(SM[e])}, {pk(SM[e])}, {pk(F[e]+2*i)}")
    for e in range(2): ln.append(f"v_add_f32 v{SM[e]}, v{SM[e]}, v{SM[e]+1}")
    mixin(P, ln, dmg[6:12], 8)
    allsum2(P, SM, T1)
    for e in range(2): P.e(f"v_mul_f32 v{SM[e]}, 0xba800000, v{SM[e]}")
    for e in range(2): P.e(f"v_mov_b32 v{SM[e]+1}, v{SM[e]}")
    ln = []
    for i in range(8):
        for e in range(2): ln.append(f"v_pk_add_f32 {pk(T1[e])}, {pk(F[e]+2*i)}, {pk(SM[e])}")
        for e in range(2): ln.append(f"v_pk_mul_f32 {pk(VR[e])}, {pk(T1[e])}, {pk(T1[e])}" if i == 0 else f"v_pk_fma_f32 {pk(VR[e])}, {pk(T1[e])}, {pk(T1[e])}, {pk(VR[e])}")
    for e in range(2): ln.append(f"v_add_f32 v{VR[e]}, v{VR[e]}, v{VR[e]+1}")
    mixin(P, ln, dmg[12:15], 12)
    allsum2(P, VR, T1)
    for e in range(2): P.e(f"v_mul_f32 v{VR[e]}, 0x3a800000, v{VR[e]}")
    for e in range(2): P.e(f"v_cvt_pk_bf16_f32 v{T1[e]}, v{SM[e]}, v{VR[e]}")
    for e in range(2): P.e(f"v_lshlrev_b32 v{SM[e]}, 16, v{T1[e]}\nv_and_b32 v{VR[e]}, s90, v{T1[e]}")
    for op in ("v_add_f32 v{v}, 0x3727c5ac, v{v}", "v_cvt_pk_bf16_f32 v{v}, v{v}, v{v}", "v_and_b32 v{v}, s90, v{v}", "v_sqrt_f32 v{v}, v{v}",
               "v_cvt_pk_bf16_f32 v{v}, v{v}, v{v}", "v_and_b32 v{v}, s90, v{v}", "v_rcp_f32 v{v}, v{v}"):
        for e in range(2): P.e(op.format(v=VR[e]))
    for e in range(2): P.e(f"v_mov_b32 v{SM[e]+1}, v{SM[e]}\nv_mov_b32 v{VR[e]+1}, v{VR[e]}")
    for half in range(2):
        for i in range(4*half, 4*half+4):
            for e in range(2): P.e(f"v_pk_add_f32 {pk(F[e]+2*i)}, {pk(F[e]+2*i)}, {pk(SM[e])}")
            for e in range(2): P.e(f"v_cvt_pk_bf16_f32 v{LX+e*8+i}, v{F[e]+2*i}, v{F[e]+2*i+1}")
            for e in range(2): P.e(f"v_lshlrev_b32 v{F[e]+2*i}, 16, v{LX+e*8+i}\nv_and_b32 v{F[e]+2*i+1}, s90, v{LX+e*8+i}")
            for e in range(2): P.e(f"v_pk_mul_f32 {pk(F[e]+2*i)}, {pk(F[e]+2*i)}, {pk(VR[e])}")
            for e in range(2): P.e(f"v_cvt_pk_bf16_f32 v{LX+e*8+i}, v{F[e]+2*i}, v{F[e]+2*i+1}")
        for e in range(2):
            b = LX + e*8 + 4*half
            if half == 0: P.e(f"ds_write2_b64 v{AP0+e}, v[{b}:{b+1}], v[{b+2}:{b+3}] offset0:0 offset1:16")
            else:
                P.e(f"ds_write_b64 v{AP0+e}, v[{b}:{b+1}] offset:8192\nds_write_b64 v{AP0+e}, v[{b+2}:{b+3}] offset:8320")
    P.e(f"v_readfirstlane_b32 s57, v29")
    P.e("s_waitcnt lgkmcnt(0)\ns_barrier")
    for i in range(4): P.e(f"ds_read_b128 v[{LX+4*i}:{LX+4*i+3}], v{AS} offset:{i*4096}")
    P.e(f"s_mul_i32 s{sN}, s57, 0x9e3779b1\ns_xor_b32 s{sN}, s{sN}, 0x5bd1e995\ns_add_u32 s57, s57, 1")
    P.e(f"v_mov_b32 v{VNON}, s{sN}\nv_mov_b32 v29, s57")
    for i in range(4):
        P.e(f"buffer_store_dwordx4 v[{LX+4*i}:{LX+4*i+3}], v{VX}, {R(WS)}, s51 offen sc1")
        if i < 3: P.e("s_add_u32 s51, s51, 0x100000")
    stamp("ln_stored")
    srd(P, KS, 62, 0x200000); srd(P, VS, 64, 0x200000); srd(P, WD, 76, 3584*2048); srd(P, WO, 68, 4096*2048); srd(P, OUT, 78, 0x400000)
    P.e(f"s_lshl_b32 s56, s{sJ}, 2\ns_add_u32 s56, s56, s53\ns_add_u32 s56, s56, {FL_LN:#x}")
    P.e("s_waitcnt vmcnt(0)\ns_barrier")
    P.e(f"buffer_store_dword v{VNON}, v{VF}, {R(WS)}, s56 offen sc1")
    stamp("ln_flag")
    st2 = []
    st2 += f"s_lshl_b32 s56, s{sR}, 2|s_add_u32 s56, s56, s{sW}|s_lshl_b32 s56, s56, 12|v_add_u32 v{VX}, s56, v{VL16}".split('|')
    st2 += f"v_lshrrev_b32 v24, 4, v{VLN}|v_bfe_u32 v25, v{VLN}, 2, 2".split('|')
    st2 += "v_lshl_add_u32 v27, v24, 2, v25|v_lshlrev_b32 v30, 6, v27|v_lshl_add_u32 v30, v26, 3, v30".split('|')
    st2 += f"v_and_b32 v31, 1, v24|v_lshl_add_u32 v{AP0}, v31, 5, v30|v_xor_b32 v{AP1}, 32, v{AP0}|v_lshlrev_b32 v{AS}, 3, v{VLN}".split('|')
    st2 += "v_and_b32 v31, 7, v27|v_lshlrev_b32 v30, 8, v27|v_lshl_add_u32 v30, v26, 3, v30|v_lshl_add_u32 v30, v31, 5, v30".split('|')
    st2.append(f"v_add_u32 v30, {z_base(16)}, v30")
    for t in range(8): st2.append(f"v_xor_b32 v{AW+t}, {t*32}, v30")
    st2 += f"v_lshrrev_b32 v27, 2, v{VLN}|s_lshl_b32 s56, s{sW}, 4|v_add_u32 v27, s56, v27|v_lshlrev_b32 v27, 8, v27".split('|')
    st2 += f"v_lshl_add_u32 v{VDV}, v26, 4, v27|v_xor_b32 v31, v24, v26|v_lshl_add_u32 v{VDK}, v31, 4, v27".split('|')
    st2 += f"s_lshl_b32 s91, s{sW}, 10|s_lshl_b32 s92, s{sW}, 12".split('|')
    st2 += f"v_add_u32 v27, s56, v24|v_and_b32 v30, 15, v{VLN}|v_lshlrev_b32 v31, 1, v24|v_xor_b32 v30, v30, v31|v_xor_b32 v31, 8, v30".split('|')
    st2 += f"s_lshl_b32 s57, s{sTC}, 8|v_lshlrev_b32 v27, 11, v27|v_add_u32 v27, s57, v27".split('|')
    st2 += f"v_lshl_add_u32 v{VD}, v30, 4, v27|v_lshl_add_u32 v{VD+1}, v31, 4, v27|v_add_u32 v{VD+1}, 0x2000, v{VD+1}".split('|')
    st2 += f"v_add_u32 v{VD+2}, 0x4000, v{VD}|v_add_u32 v{VD+3}, 0x4000, v{VD+1}".split('|')
    st2 += f"s_lshl_b32 s56, s{sR}, 3|s_lshl_b32 s57, s{sW}, 1|s_add_u32 s56, s56, s57|s_lshl_b32 s56, s56, 12".split('|')
    st2 += f"v_add_u32 v{VH0}, s56, v{VL16}|v_add_u32 v{VH1}, 0x1000, v{VH0}".split('|')
    st2 += f"v_and_b32 v27, 15, v{VLN}|v_lshlrev_b32 v27, 4, v27|v_and_b32 v30, 1, v24|v_lshl_add_u32 v27, v30, 10, v27".split('|')
    st2 += f"v_lshrrev_b32 v30, 5, v{VLN}|v_lshl_add_u32 v27, v30, 8, v27|v_add_u32 v{VO}, s56, v27".split('|')
    st2 += f"s_mov_b32 s93, {(-(NSLOT-1)*SLOT) & 0xffffffff:#x}|s_mov_b32 s94, {SLOT}|s_mov_b32 s100, 0|s_mov_b32 s95, 0".split('|')
    st2 += f"s_lshl_b32 s50, s{sQ}, 19|s_add_u32 s50, s50, {1536*256:#x}|s_mul_i32 s52, s{sQ}, {896*2048:#x}".split('|')
    st2 += [f"v_mov_b32 v{WR+i}, 0" for i in range(4)]
    mixin(P, st2, dmg[15:], 7)
    ZR = f"v[{WR}:{WR+3}]"
    for i in range(15): P.e(f"v_mfma_f32_32x32x16_bf16 a[{16*i}:{16*i+15}], {ZR}, {ZR}, 0")
    for i in range(7): P.e(f"v_mfma_f32_32x32x16_bf16 v[{GA+16*i}:{GA+16*i+15}], {ZR}, {ZR}, 0")
    stamp("setup")
    P.e(f"s_cmp_lg_u32 s{sW}, 0\ns_cbranch_scc1 L_lnjoin")
    P.e(f"v_and_b32 v27, 31, v{VLN}\nv_lshlrev_b32 v27, 2, v27\ns_add_u32 s56, s53, {FL_LN:#x}")
    P.e("L_lnpoll:")
    P.e(f"buffer_load_dword v{VPOLL}, v27, {R(WS)}, s56 offen sc1")
    P.e("s_waitcnt vmcnt(0)")
    P.e(f"v_cmp_ne_u32 vcc, s{sN}, v{VPOLL}")
    P.e(f"s_add_u32 s100, s100, 1\ns_cmp_gt_u32 s100, {SPIN_MAX}\ns_cbranch_scc1 L_lnjoin")
    P.e("s_cbranch_vccnz L_lnpoll")
    P.e("L_lnjoin:")
    P.e("s_waitcnt vmcnt(0)\ns_barrier")
    stamp("ln_done")
    def xload(st):
        return [(f"buffer_load_dwordx4 v[{XR+st*16+4*f}:{XR+st*16+4*f+3}], v{VX}, {R(WS)}, s85 offen offset:{1024*f}", {}) for f in range(4)] + \
               [("s_add_u32 s85, s85, 0x20000", {})]
    for st in range(3): emit_list(xload(st))
    P.e(f"s_add_u32 s56, s53, {FL_EPOCH:#x}\ns_cmp_eq_u32 s{sJ}, 0\ns_cselect_b32 s56, s56, {OOB:#x}\ns_lshl_b32 s53, s{sQ}, 21")
    P.e(f"buffer_store_dword v29, v{VF}, {R(WS)}, s56 offen sc1")

    tiles = [('q', t) for t in range(8)] + [('g', t) for t in range(7)] + [('u', t) for t in range(7)]
    NT = len(tiles)
    def acc(kind, t, mt):
        if kind == 'q': b = QA + (t*4+mt)*4; return f"a[{b}:{b+3}]"
        if kind == 'g': b = GA + (t*4+mt)*4; return f"v[{b}:{b+3}]"
        b = UA + (t*4+mt)*4; return f"a[{b}:{b+3}]"
    def wread(f, ring, tag):
        kind, t = tiles[f]
        base = {'q': 0, 'g': 8192, 'u': 16384}[kind]
        r = WR + ring*4
        if kind != 'q' and t == 6: a, off = AS, base + 6144
        else: a, off = (AP0 if t % 2 == 0 else AP1), base + (t//2)*2048
        return [(f"ds_read_b64_tr_b16 v[{r}:{r+1}], v{a} offset:{off}", dict(tag=tag)),
                (f"ds_read_b64_tr_b16 v[{r+2}:{r+3}], v{a} offset:{off+1024}", dict(tag=tag))]
    LEAD, DAH = 5, 4
    for f in range(LEAD): emit_list(wread(f, f % 8, ('W', 0)))
    def kstep(st):
        stepfn = lambda k: k*4 + st
        tg = lambda d: (lambda k: ('W', stepfn(k) + d))
        tgr = lambda d: (lambda k: ('W', stepfn(k) + d) if stepfn(k) + d < 32 else None)
        ring0 = (st * NT) % 8
        mf = []
        for f in range(NT):
            kind, t = tiles[f]
            wr = WR + ((ring0 + f) % 8) * 4
            for mt in range(4):
                xr = XR + st*16 + mt*4
                kw = {}
                if f == 0 and mt == 0: kw = dict(rdx=f"v[{XR+st*16}:{XR+st*16+15}]")
                elif f % 2 == 1 and mt == 0 and f + 1 < NT:
                    w2 = WR + ((ring0 + f + 1) % 8) * 4; kw = dict(rdx=f"v[{w2}:{w2+3}]")
                a = acc(kind, t, mt)
                mf.append((f"v_mfma_f32_16x16x32_bf16 {a}, v[{wr}:{wr+3}], v[{xr}:{xr+3}], {a}", kw))
        G = Gaps(mf, False)
        for f in range(1, NT, 2): G.resv[4*f-1] = 1
        G.resv[87] = 1
        for f in range(NT):
            ff = f + LEAD
            rd = wread(ff, (ring0 + ff) % 8, tg(0)) if ff < NT else wread(ff-NT, (ring0 + ff) % 8, tgr(1))
            G.put(4*f, rd[0]); G.put(4*f+2, rd[1])
        G.put(53, [(f"s_add_u32 s87, s87, {SLOT}", {}), (f"s_cmp_eq_u32 s87, {SLOT*NSLOT}", {}), ("s_cselect_b32 s87, 0, s87", {}), ("s_cselect_b32 s54, s93, s94", {})])
        G.put(61, f"v_add_u32 v{AP0}, s54, v{AP0}"); G.put(65, f"v_add_u32 v{AP1}, s54, v{AP1}"); G.put(69, f"v_add_u32 v{AS}, s54, v{AS}")
        G.put(4*(NT-LEAD)-1, ("s_barrier", dict(needs=lambda k: [('W', stepfn(k) + 1)])))
        G.put(81, slot_adv())
        G.put(83, [("s_cmp_ge_u32 s83, 0x800000", {}), (f"s_cselect_b32 s86, {DROP:#x}, s86", {})])
        G.put(85, [(f"s_cmp_ge_u32 s85, {XN_OFF+XN_SIZE:#x}", {}), (f"s_cselect_b32 s85, {OOB:#x}, s85", {})])
        wd = wdma(tg(DAH), lambda k: wrng(stepfn(k) + DAH))
        xl = xload((st+3) % 4)
        ops = wd[:6] + xl[:1] + wd[6:8] + xl[1:2] + wd[8:10] + xl[2:3] + wd[10:12] + xl[3:] + wd[12:]
        G.spread(ops, 0, 78)
        return G
    P.e("s_mov_b32 s55, 8")
    P.e("L_kloop:")
    P.loop_begin(8)
    for st in range(4):
        G = kstep(st)
        if st == 3: G.put(86, ["s_sub_u32 s55, s55, 1", "s_cmp_lg_u32 s55, 0"])
        G.emit(P)
    P.e("s_cbranch_scc1 L_kloop")
    P.loop_end()
    stamp("kloop")
    def kvdma(z, dyn=False, tag=None, slot=None):
        isv = z % 2
        kw = dict(tag=tag or ('Z', z), slot=slot or z_rng(z))
        g = []
        if dyn: g.append(("s_add_u32 s88, s86, s91", {}))
        for cb in range(4):
            m0 = f"s_add_u32 m0, s88, {cb*4096 - 64*cb}" if dyn else f"s_add_u32 m0, s91, {z_base(z) + cb*4096 - 64*cb}"
            g += [(m0, {}), (f"buffer_load_dwordx4 v{VDV if isv else VDK}, {R(VS if isv else KS)}, s51 offen offset:{64*cb} lds", kw)]
        if isv: g.append(("s_add_u32 s51, s51, 0x4000", {}))
        return g
    def zadv(): return [("s_add_u32 s86, s86, 0x4000", {}), (f"s_cmp_eq_u32 s86, {LDS_BYTES}", {}), ("s_cselect_b32 s86, 0, s86", {})]
    P.e("s_waitcnt lgkmcnt(0)\ns_barrier\ns_mov_b32 s51, s50")
    P.e(f"s_lshr_b32 s54, s{sJ}, 1\ns_mul_i32 s54, s54, 7\ns_lshl_b32 s55, s59, 2\ns_add_u32 s55, s55, s54")
    def ktoff(dst, ktreg):
        P.e(f"s_lshr_b32 s56, {ktreg}, 1\ns_lshl_b32 s56, s56, 18\ns_and_b32 s57, {ktreg}, 1\ns_lshl_b32 s57, s57, 11\ns_add_u32 s{dst}, s56, s57\ns_add_u32 s{dst}, s{dst}, {H_OFF:#x}")
    kvg = groups([x for z in range(8) for x in kvdma(z)])
    for p in range(3):
        ktoff(83+p, "s55"); P.e("s_add_u32 s55, s55, 1")
        emit_list(kvg.pop(0))
    P.e("s_add_u32 s54, s54, 3"); ktoff(87, "s54")
    P.e("s_lshl_b32 s56, s59, 3\ns_add_u32 s87, s87, s56")
    P.e(f"s_mov_b32 s54, {NLOG2E:#x}\ns_mov_b32 s55, {NLOG2E:#x}\ns_mov_b32 s56, 1.0\ns_mov_b32 s57, 1.0")
    HT = WR
    def glu(t, mt, dst, e):
        g = GA + (t*4+mt)*4; u = UA + (t*4+mt)*4
        s1 = [f"v_pk_mul_f32 v[{e}:{e+1}], v[{g}:{g+1}], s[54:55]", f"v_pk_mul_f32 v[{e+2}:{e+3}], v[{g+2}:{g+3}], s[54:55]"]
        s1 += [f"v_accvgpr_read_b32 v{e+4+i}, a{u+i}" for i in range(4)]
        s2 = [f"v_exp_f32 v{e+i}, v{e+i}" for i in range(4)]
        s3 = [f"v_pk_add_f32 v[{e}:{e+1}], v[{e}:{e+1}], s[56:57]", f"v_pk_add_f32 v[{e+2}:{e+3}], v[{e+2}:{e+3}], s[56:57]"]
        s4 = [f"v_rcp_f32 v{e+i}, v{e+i}" for i in range(4)]
        s5 = [f"v_pk_mul_f32 v[{e}:{e+1}], v[{e}:{e+1}], v[{e+4}:{e+5}]", f"v_pk_mul_f32 v[{e+2}:{e+3}], v[{e+2}:{e+3}], v[{e+6}:{e+7}]"]
        s6 = [f"v_cvt_pk_bf16_f32 v{dst}, v{e}, v{e+1}", f"v_cvt_pk_bf16_f32 v{dst+1}, v{e+2}, v{e+3}"]
        return [s1, s2, s3, s4, s5, s6]
    n = 0
    HD = XR
    for p in range(4):
        for mt in range(4):
            dst = HD + (n % 8) * 4; n += 1
            ts = [2*p, 2*p+1] if p < 3 else [6]
            stages = [glu(t, mt, dst + 2*i, HT + ((2*n+i) % 4) * 8) for i, t in enumerate(ts)]
            for s in range(6):
                for sg in stages:
                    for x in sg[s]: P.e(x)
                if s == 2 and kvg: emit_list(kvg.pop(0))
            vh = VH0 if mt < 2 else VH1
            if p < 3: P.e(f"buffer_store_dwordx4 v[{dst}:{dst+3}], v{vh}, {R(WS)}, s{83+p} offen offset:{(mt&1)*1024} sc1", tag='Hst')
            else: P.e(f"buffer_store_dwordx2 v[{dst}:{dst+1}], v{vh}, {R(WS)}, s87 offen offset:{(mt&1)*1024} sc1", tag='Hst')
    stamp("glu")
    P.e(f"s_mov_b32 s54, {QSCALE:#x}\ns_mov_b32 s55, {QSCALE:#x}")
    for qt in range(2):
        for t in range(8):
            e = HT + ((qt*8+t) % 4) * 8
            d = QF + (qt*8+t)*4
            if kvg: emit_list(kvg.pop(0))
            for i in range(2):
                src = QA + (t*4 + 2*qt + i)*4
                for k in range(4): P.e(f"v_accvgpr_read_b32 v{e+4*i+k}, a{src+k}")
            for k in range(4): P.e(f"v_pk_mul_f32 v[{e+2*k}:{e+2*k+1}], v[{e+2*k}:{e+2*k+1}], s[54:55]")
            for k in range(4): P.e(f"v_cvt_pk_bf16_f32 v{d+k}, v{e+2*k}, v{e+2*k+1}")
            if t > 0 or qt > 0:
                pd = d - 4
                P.e(f"v_permlane16_swap_b32 v{pd}, v{pd+2}\nv_permlane16_swap_b32 v{pd+1}, v{pd+3}")
    assert not kvg
    pd = QF + 15*4
    P.e(f"v_permlane16_swap_b32 v{pd}, v{pd+2}\nv_permlane16_swap_b32 v{pd+1}, v{pd+3}")
    stamp("qconv")
    P.e("L_att_entry:")
    P.e(f"v_and_b32 v24, 31, v{VLN}\nv_lshrrev_b32 v25, 5, v{VLN}\nv_bfe_u32 v26, v{VLN}, 2, 2")
    P.e(f"v_xor_b32 v27, v26, v25\nv_lshlrev_b32 v24, 6, v24\nv_lshl_add_u32 v{AK0}, v27, 4, v24\nv_xor_b32 v{AK1}, 32, v{AK0}")
    P.e("s_barrier", needs=[('Z', 0), ('Z', 1)])
    ringpos = [0]
    def kread(sub, t, tag):
        r = KVR + (ringpos[0] % 8)*4; ringpos[0] += 1
        return r, [(f"ds_read_b128 a[{r}:{r+3}], v{AK0 if t % 2 == 0 else AK1} offset:{(t//2)*4096 + sub*2048}", dict(tag=tag))]
    def vread(sub, ks, dt, tag):
        r = KVR + (ringpos[0] % 8)*4; ringpos[0] += 1
        off = dt*4096 + sub*2048 + ks*1024
        return r, [(f"ds_read_b64_tr_b16 a[{r}:{r+1}], v{AV} offset:{off}", dict(tag=tag)),
                   (f"ds_read_b64_tr_b16 a[{r+2}:{r+3}], v{AV} offset:{off+512}", dict(tag=tag))]
    def S(buf, qt): return SB + (buf*2+qt)*16
    def PR(buf, qt): return PB + (buf*2+qt)*8
    def seg_qk(sub, tag, czero=False):
        frs = []
        for t in range(8):
            r, rd = kread(sub, t, tag)
            ms = []
            for qt in range(2):
                s = S(sub, qt); q = QF + (qt*8+t)*4
                c = f"v[{s}:{s+15}]" if t > 0 else ("0" if czero else f"v[{NM+qt*16}:{NM+qt*16+15}]")
                ms.append(f"v_mfma_f32_32x32x16_bf16 v[{s}:{s+15}], a[{r}:{r+3}], v[{q}:{q+3}], {c}")
            frs.append((rd, ms))
        return frs
    def seg_pv(sub, tag):
        frs = []
        for ks in range(2):
            for dt in range(4):
                r, rd = vread(sub, ks, dt, tag)
                ms = []
                for qt in range(2):
                    o = QA + (qt*4+dt)*16; p = PR(sub, qt) + ks*4
                    ms.append(f"v_mfma_f32_32x32x16_bf16 a[{o}:{o+15}], a[{r}:{r+3}], v[{p}:{p+3}], a[{o}:{o+15}]")
                frs.append((rd, ms))
        return frs
    def softmax_ops(buf, sub_m=False):
        elems = [(qt, i) for i in range(16) for qt in range(2)]
        ops = []
        def E(n): qt, i = elems[n]; return f"v_exp_f32 v{S(buf,qt)+i}, v{S(buf,qt)+i}"
        def A(n): qt, i = elems[n]; return f"v_add_f32 v{LN0+qt*2+(i&1)}, v{LN0+qt*2+(i&1)}, v{S(buf,qt)+i}"
        def M(n): qt, i = elems[n]; return f"v_add_f32 v{S(buf,qt)+i}, v{S(buf,qt)+i}, v{NM+qt*16}"
        def C(n): qt, i = elems[n]; return f"v_cvt_pk_bf16_f32 v{PR(buf,qt)+i//2}, v{S(buf,qt)+i-1}, v{S(buf,qt)+i}"
        if sub_m: ops += [M(0), M(1)]
        grp = []
        for n in range(34):
            g = []
            if n < 32: g.append(E(n))
            if sub_m and n + 2 < 32: g.append(M(n+2))
            if n >= 2:
                g.append(A(n-2))
                if elems[n-2][1] % 2 == 1: g.append(C(n-2))
            grp.append(g)
        if sub_m: grp[0] = ops + grp[0]
        return grp
    def place_sm(G, grp, g0, g1):
        for n, g in enumerate(grp): G.put(g0 + n * (g1 - g0) // len(grp), g)
    ALEAD = 4
    def build(segs, nxt):
        frs = [f for s in segs for f in s]
        allr = frs + nxt
        G = Gaps([m for rd, ms in frs for m in ms], True)
        for n in range(len(frs)):
            if n + ALEAD < len(allr):
                r = allr[n+ALEAD][0]
                G.put(2*n, r[0])
                if len(r) > 1: G.put(2*n+1, r[1])
            G.resv[2*n+1] = 1
        return G
    qk0 = seg_qk(0, ('Z', 0), czero=True); qk1 = seg_qk(1, ('Z', 0)); pvf = seg_pv(0, ('Z', 1))
    for n in range(ALEAD): emit_list(qk0[n][0])
    P.e(f"v_mov_b32 v{PB}, 0\nv_mov_b32 v{PB+1}, 0\nv_mov_b32 v{PB+2}, 0\nv_mov_b32 v{PB+3}, 0")
    P.e("v_lshl_add_u32 v26, v25, 2, v26\nv_lshlrev_b32 v26, 6, v26")
    for i in range(8): P.e(f"v_mfma_f32_32x32x16_bf16 a[{16*i}:{16*i+15}], v[{PB}:{PB+3}], v[{PB}:{PB+3}], 0")
    G = build([qk0], qk1)
    VP8, VP4 = TMP+6, TMP+7
    misc = [f"v_bfe_u32 v27, v{VLN}, 4, 1", "v_lshl_add_u32 v26, v27, 5, v26", f"v_and_b32 v27, 3, v{VLN}", "v_lshl_add_u32 v26, v27, 3, v26",
            f"v_add_u32 v{AV}, {z_base(1)}, v26", f"v_lshlrev_b32 v{VP4}, 2, v27", f"v_and_b32 v27, 7, v{VLN}", f"v_lshlrev_b32 v{VP8}, 2, v27"]
    misc += [f"v_mov_b32 v{LN0+i}, 0" for i in range(4)]
    misc += [f"s_lshl_b32 s54, s{sR}, 2", f"s_add_u32 s54, s54, s{sQ}", "s_lshl_b32 s54, s54, 7", f"s_add_u32 s85, s54, {FL_H:#x}", f"s_add_u32 s89, s54, {FL_O:#x}",
             f"s_lshl_b32 s55, s{sTC}, 2", "s_add_u32 s83, s85, s55", "s_add_u32 s84, s89, s55"]
    misc += [f"v_lshrrev_b32 v0, 1, v{VLN}", "v_lshlrev_b32 v0, 11, v0", f"v_and_b32 v27, 1, v{VLN}", "v_lshl_add_u32 v0, v27, 7, v0"]
    left = G.stream(misc, 0, 16); assert not left
    G.emit(P)
    P.e(f"s_and_b32 s54, s{sR}, 3\ns_lshl_b32 s55, s{sW}, 2\ns_add_u32 s54, s54, s55\ns_lshl_b32 s54, s54, 16\ns_lshl_b32 s55, s{sTC}, 8\ns_add_u32 s54, s54, s55")
    P.e(f"v_add_u32 v0, s54, v0\ns_mov_b64 s[4:5], s[{WD}:{WD+1}]\ns_mov_b32 s6, s{WD+2}\ns_mov_b32 s59, s52")
    P.e(f"s_lshl_b32 s87, s{sR}, 3\ns_add_u32 s87, s87, s{sTC}\ns_mul_i32 s80, s{sQ}, {14*0x40000:#x}\ns_add_u32 s80, s80, {H_OFF:#x}")
    P.e(f"s_mov_b32 s86, {z_base(8)}\ns_mov_b32 s81, 0\ns_mov_b32 s82, {z_base(1)}\ns_mov_b32 s93, {(-131072) & 0xffffffff:#x}\ns_mov_b32 s94, 0x8000\ns_mov_b32 s58, s52")
    P.e("s_cmp_lg_u32 s95, 0\ns_cbranch_scc1 L_havemax")
    for qt in range(2): P.e(f"v_max3_f32 v{MX+qt}, v{S(0,qt)}, v{S(0,qt)+1}, v{S(0,qt)+2}")
    for i in range(3, 15, 2):
        for qt in range(2): P.e(f"v_max3_f32 v{MX+qt}, v{MX+qt}, v{S(0,qt)+i}, v{S(0,qt)+i+1}")
    for qt in range(2): P.e(f"v_max_f32 v{MX+qt}, v{MX+qt}, v{S(0,qt)+15}")
    for qt in range(2): P.e(f"v_mov_b32 v{TMP+qt}, v{MX+qt}")
    for qt in range(2): P.e(f"v_permlane32_swap_b32 v{MX+qt}, v{TMP+qt}")
    for qt in range(2): P.e(f"v_max_f32 v{MX+qt}, v{MX+qt}, v{TMP+qt}")
    P.e("L_havemax:")
    for qt in range(2):
        for i in range(16): P.e(f"v_sub_f32 v{NM+qt*16+i}, 0, v{MX+qt}")
    def adv2(sreg, dreg):
        return [(f"s_add_u32 s{sreg}, s{sreg}, 0x8000", {}), (f"s_cmp_ge_u32 s{sreg}, {LDS_BYTES}", {}),
                (f"s_cselect_b32 s{dreg}, s93, s94", {})], [(f"s_cselect_b32 s57, {LDS_BYTES}, 0", {}), (f"s_sub_u32 s{sreg}, s{sreg}, s57", {})]
    G = build([qk1], pvf)
    place_sm(G, softmax_ops(0, sub_m=True), 0, 16)
    G.put(2*(8-ALEAD)-1, ("s_barrier", dict(needs=[('Z', 2)])))
    G.put(10, f"v_add_u32 v{AK0}, 0x8000, v{AK0}"); G.put(12, f"v_add_u32 v{AK1}, 0x8000, v{AK1}")
    G.put(13, "s_mov_b32 s81, 0x8000")
    G.emit(P)
    def p2dma(z, dyn=False, tag=None, slot=None):
        s = z - 16
        kw = dict(tag=tag or ('Z', z), slot=slot or z_rng(z))
        g = [("s_add_u32 s88, s86, s92", {})] if dyn else []
        for b in range(4):
            m0 = f"s_add_u32 m0, s88, {b*1024}" if dyn else f"s_add_u32 m0, s92, {z_base(z) + b*1024}"
            g += [(m0, {}), (f"buffer_load_dwordx4 v{VD+b}, {R(WD if s < 14 else WO)}, s58 offen lds", kw)]
        g.append(("s_mov_b32 s58, s53", {}) if s == 13 else ("s_add_u32 s58, s58, 0x20000", {}))
        return g
    def att_iter(i0, kv):
        ringpos[0] = 16
        I = lambda k: i0 + k
        tV = lambda k: ('Z', 2*I(k)-1); tK = lambda k: ('Z', 2*I(k))
        segs = [seg_pv(0, tV), seg_qk(0, tK), seg_pv(1, tV), seg_qk(1, tK)]
        G = build(segs, seg_pv(0, lambda k: ('Z', 2*I(k)+1)))
        place_sm(G, softmax_ops(1), 1, 31)
        place_sm(G, softmax_ops(0), 33, 63)
        bg = 2*(32-ALEAD)-1
        G.put(bg, ("s_barrier", dict(needs=lambda k: [('Z', 2*I(k)+1), 'Hst'] + ([('Z', 2*I(k)+2)] if I(k) < 7 else []))))
        a, b = adv2(82, 54); G.put(44, a + b); G.put(50, f"v_add_u32 v{AV}, s54, v{AV}")
        a, b = adv2(81, 55); G.put(52, a + b)
        G.put(58, f"v_add_u32 v{AK0}, s55, v{AK0}"); G.put(60, f"v_add_u32 v{AK1}, s55, v{AK1}")
        fn = kvdma if kv else p2dma
        zs = [lambda k: 2*I(k)+6, lambda k: 2*I(k)+7]
        d0 = fn(8 if kv else 16, True, lambda k: ('Z', zs[0](k)), lambda k: z_rng(zs[0](k)))
        d1 = fn(9 if kv else 17, True, lambda k: ('Z', zs[1](k)), lambda k: z_rng(zs[1](k)))
        G.put(20, zadv()); G.put(46, zadv())
        G.spread(d0, 0, 20); G.spread(d1, 21, 43)
        if kv:
            G.put(bg+2, f"buffer_store_dword v{VNON}, v{VF}, {R(WS)}, s83 offen sc1")
            if not opt.get('nopf'): G.put(47, f"buffer_load_dword v{VPOLL}, v0, s[4:7], s59 offen")
            G.put(48, ["s_add_u32 s59, s59, 0x100000", "s_cmp_eq_u32 s56, 3", f"s_cselect_b32 s4, s{WO}, s4"])
            G.salu[48] += [(f"s_cselect_b32 s5, s{WO+1}, s5", {}), (f"s_cselect_b32 s6, s{WO+2}, s6", {}), ("s_cselect_b32 s59, s53, s59", {})]
        else: G.put(bg+2, f"buffer_load_dword v{VPOLL}, v{VP8}, {R(WS)}, s85 offen sc1")
        G.put(62, ["s_sub_u32 s56, s56, 1", "s_cmp_lg_u32 s56, 0"])
        return G
    for nm, i0, cnt, kv in (("A", 1, 4, True), ("B", 5, 3, False)):
        P.e(f"s_mov_b32 s56, {cnt}\nL_att{nm}:")
        P.loop_begin(cnt)
        att_iter(i0, kv).emit(P)
        P.e(f"s_cbranch_scc1 L_att{nm}")
        P.loop_end()
    XS2 = [48, 144, 80, 112]
    def x2load(s):
        b = XS2[s % 4]
        ops = []
        for a in range(2):
            for kp in range(2):
                for mt in range(2):
                    r = b + (kp*4 + a*2 + mt)*4
                    ops.append((f"buffer_load_dwordx4 v[{r}:{r+3}], v{VH0+a}, {R(WS)}, s80 offen offset:{kp*2048+mt*1024}", {}))
        if s == 13: ops += [(f"s_lshl_b32 s80, s{sQ}, 22", {}), (f"s_add_u32 s80, s80, {O_OFF:#x}", {})]
        else: ops.append(("s_add_u32 s80, s80, 0x40000", {}))
        return ops
    spin = []
    def pollchk(name, voff, soff):
        spin.append(f"L_spin_{name}:\nbuffer_load_dword v{VPOLL},v{voff},{R(WS)},{soff} offen sc1\ns_waitcnt vmcnt(0)\nv_cmp_ne_u32 vcc,s{sN},v{VPOLL}\n"
                    f"s_add_u32 s100,s100,1\ns_cmp_gt_u32 s100,{SPIN_MAX}\ns_cbranch_scc1 L_ok_{name}\ns_nop 4\n"
                    f"s_cbranch_vccnz L_spin_{name}\ns_branch L_ok_{name}")
        return [(f"v_cmp_ne_u32 vcc, s{sN}, v{VPOLL}", {}), (f"s_cbranch_vccnz L_spin_{name}", {}), (f"L_ok_{name}:", {})]
    ringpos[0] = 16
    G = build([seg_pv(0, ('Z', 15)), seg_pv(1, ('Z', 15))], [])
    place_sm(G, softmax_ops(1), 1, 15)
    chk = pollchk("h", VP8, "s85")
    G.put(0, chk[0]); G.salu[2] += chk[1:]
    G.spread(x2load(0) + x2load(1), 3, 31)
    g15 = 16
    CHK = TMP
    G.put(g15 - 3, [f"v_mov_b32 v{CHK+2}, {f32(2.0**40):#x}", f"v_mov_b32 v{CHK+3}, {z_base(14)}"])
    chkops = [f"v_add_f32 v{LN0}, v{LN0}, v{LN0+1}", f"v_add_f32 v{LN0+2}, v{LN0+2}, v{LN0+3}",
              f"v_add_f32 v{CHK+1}, v{LN0}, v{LN0+2}", f"v_mov_b32 v{LN0+1}, v{LN0}", f"v_mov_b32 v{LN0+3}, v{LN0+2}",
              f"v_cmp_nlt_f32 vcc, v{CHK+1}, v{CHK+2}",
              (f"v_permlane32_swap_b32 v{LN0}, v{LN0+1}", {}, 1), f"v_permlane32_swap_b32 v{LN0+2}, v{LN0+3}"]
    left = G.stream(chkops, g15, g15 + 4); assert not left
    G.salu[g15 + 4] += [("s_cmp_lg_u64 vcc, 0", {}), ("s_cselect_b32 s54, 1, 0", {})]
    G.put(g15 + 5, [f"v_mov_b32 v{CHK}, s54", f"v_add_f32 v{LN0}, v{LN0}, v{LN0+1}", f"v_add_f32 v{LN0+2}, v{LN0+2}, v{LN0+3}",
                    f"v_add_u32 v{CHK+1}, s91, v{CHK+3}"])
    G.put(g15 + 6, f"ds_write_b32 v{CHK+1}, v{CHK}")
    G.put(g15 + 6, [f"v_rcp_f32 v{LN0}, v{LN0}", f"v_rcp_f32 v{LN0+2}, v{LN0+2}"])
    G.salu[g15 + 8] += [("s_waitcnt lgkmcnt(0)", {}), ("s_barrier", dict(needs=[('Z', 16)]))]
    for w in range(4): G.put(g15 + 9 + (w // 2), f"ds_read_b32 v{CHK+w if w < 3 else CHK+4}, v{CHK+3} offset:{w*1024}")
    WR2, LEAD2 = 176, 4
    def w2read(s, f):
        kp, t = f // 8, f % 8
        r = WR2 + (f % 8)*4
        tag = ('Z', 16+s)
        return [(f"ds_read_b64_tr_b16 v[{r}:{r+1}], v{AW+t} offset:{kp*8192}", dict(tag=tag)),
                (f"ds_read_b64_tr_b16 v[{r+2}:{r+3}], v{AW+t} offset:{kp*8192+4096}", dict(tag=tag))]
    for f in range(LEAD2): G.put(g15 + 11 + f, w2read(0, f))
    sc = [f"s_lshl_b32 s54, s{sJ}, 19", f"s_add_u32 s54, s54, {O_OFF:#x}", "s_add_u32 s55, s54, 0x40000", "s_add_u32 s56, s54, 0x1000", "s_add_u32 s57, s55, 0x1000"]
    G.emit(P)
    P.e(f"v_or3_b32 v{CHK}, v{CHK}, v{CHK+1}, v{CHK+2}\nv_or_b32 v{CHK}, v{CHK}, v{CHK+4}")
    P.e(f"v_readfirstlane_b32 s54, v{CHK}")
    P.e("s_andn2_b32 s54, s54, s95\ns_cbranch_scc1 L_fallback")
    stamp("attn")
    BA, SA = 128, 0
    OT = 208
    emit_list(sc)
    P.e(f"s_lshl_b32 s86, s87, 18\ns_lshl_b32 s81, s{sW}, 16\ns_add_u32 s81, s81, s86\ns_lshl_b32 s82, s{sQ}, 14\ns_add_u32 s81, s81, s82")
    P.e(f"s_lshl_b32 s82, s{sQ}, 16\ns_add_u32 s82, s82, s86\ns_add_u32 s82, s82, s92")
    P.e(f"s_lshl_b32 s87, s87, 7\ns_lshl_b32 s83, s{sQ}, 2\ns_add_u32 s83, s83, s87\ns_mov_b32 s59, {NLOG2E:#x}")
    oops = []
    n = 0
    for qt in range(2):
        for dt in range(4):
            for u in range(2):
                e = OT + (n % 4)*8; d = OT + 32 + (n % 4)*4; n += 1
                o = QA + (qt*4+dt)*16
                src = [o + 4*u + k for k in range(4)] + [o + 4*u + 8 + k for k in range(4)]
                oops += [f"v_accvgpr_read_b32 v{e+k}, a{src[k]}" for k in range(8)]
                oops += [f"v_mul_f32 v{e+k}, v{e+k}, v{LN0+qt*2}" for k in range(8)]
                oops += [f"v_cvt_pk_bf16_f32 v{d+k}, v{e+2*k}, v{e+2*k+1}" for k in range(4)]
                oops.append((f"buffer_store_dwordx4 v[{d}:{d+3}], v{VO}, {R(WS)}, s{54 + (dt >> 1) + 2*qt} offen offset:{u*512 + (dt&1)*2048} sc1", dict(tag='Ost')))
    def publish_ops(accb, exoff, tag, tmp, pk):
        ops = []
        n = 0
        for v in range(4):
            ops.append((f"s_add_u32 s86, s81, {exoff + v*4096:#x}", {}))
            for i in range(4):
                e = tmp + (n % 2)*8; d = pk + (n % 4)*4; n += 1
                src = accb + v*32 + i*8
                ops += [f"v_accvgpr_read_b32 v{e+k}, a{src+k}" for k in range(8)]
                ops += [f"v_cvt_pk_bf16_f32 v{d+k}, v{e+2*k}, v{e+2*k+1}" for k in range(4)]
                ops.append((f"buffer_store_dwordx4 v[{d}:{d+3}], v{VL16}, {R(WS)}, s86 offen offset:{i*1024} sc1", dict(tag=tag)))
        return ops
    GV = 224
    def limit(ops, nst):
        c = 0
        for i, x in enumerate(ops):
            if isinstance(x, tuple) and x[0].startswith('buffer_store'):
                c += 1
                if c > nst: return ops[:i], ops[i:]
        return ops, []
    pend = list(oops)
    state = {}
    XRES = XS2[27 % 4]
    WLEAD = 6
    SO, SBP = opt.get('so', 10), opt.get('sbp', 25)
    prev_vm = -3
    for s in range(30):
        accb = BA if s < 14 else SA
        xb = XS2[s % 4]
        mf = []
        for f in range(16):
            kp, t = f // 8, f % 8
            wr = WR2 + (f % 8)*4
            for mt in range(4):
                a = accb + (mt*8+t)*4
                xr = xb + (kp*4+mt)*4
                kw = {}
                if f == 0 and mt == 0: kw = dict(rdx=f"v[{xb}:{xb+31}]")
                elif f % 2 == 1 and mt == 0 and f < 15:
                    w2 = WR2 + ((f+1) % 8)*4; kw = dict(rdx=f"v[{w2}:{w2+3}]")
                c = "0" if (s in (0, 14) and kp == 0) else f"a[{a}:{a+3}]"
                mf.append((f"v_mfma_f32_16x16x32_bf16 a[{a}:{a+3}], v[{wr}:{wr+3}], v[{xr}:{xr+3}], {c}", kw))
        G = Gaps(mf, False)
        G.aa = True; G.vmgap = opt.get('vmgap', 2); G.prev_vm = prev_vm
        for f in range(1, 16, 2): G.resv[4*f-1] = 1
        G.resv[63] = 1
        for f in range(16):
            ff = f + LEAD2
            if ff >= 16 and s == 29: continue
            rd = w2read(s, ff) if ff < 16 else w2read(s+1, ff-16)
            G.put(4*f, rd[0]); G.put(4*f+2, rd[1])
        bg = 4*(16-LEAD2) - 1
        if s < 29:
            needs = [('Z', 16+s+1)]
            if s == state.get('oflag'): needs.append('Ost')
            if s == state.get('bflag'): needs.append('Bst')
            G.put(bg, ("s_barrier", dict(needs=needs)))
            if s == state.get('oflag'): G.put(bg+2, f"buffer_store_dword v{VNON}, v{VF}, {R(WS)}, s84 offen sc1")
            if s == state.get('bflag'):
                G.put(bg-2, f"s_add_u32 s86, s83, {FL_BP:#x}")
                G.put(bg+2, f"buffer_store_dword v{VNON}, v{VF}, {R(WS)}, s86 offen sc1")
            d = (z_base(16+s+1) - z_base(16+s)) & 0xffffffff
            for t in range(8): G.put(4*(8+t-LEAD2)+3 - (1 if G.resv[4*(8+t-LEAD2)+3] else 0), f"v_add_u32 v{AW+t}, {d:#x}, v{AW+t}")
        g_first = 0
        if s == SO: G.put(1, f"buffer_load_dword v{VPOLL}, v{VP8}, {R(WS)}, s89 offen sc1"); g_first = 2
        if s == SBP: G.put(1, f"buffer_load_dword v{VPOLL}, v{VP4}, {R(WS)}, s54 offen sc1"); g_first = 2
        if s == SBP - 1: G.put(41, f"s_add_u32 s54, s87, {FL_BP:#x}")
        if s in (SO + 1, SBP + 1):
            c = pollchk("o", VP8, "s89") if s == SO + 1 else pollchk("bp", VP4, "s54")
            G.put(1, c[0]); G.salu[5] += c[1:]; g_first = 6
        xl = x2load(s+3) if s + 3 < 30 else []
        if s == 0: xl = x2load(2) + xl[:4]
        if s == 1: xl = x2load(3)[4:] + xl
        dm = p2dma(16+s+WLEAD) if s + WLEAD < 30 else []
        dg, xg = (groups(dm) if dm else []), (groups(xl) if xl else [])
        mix = []
        while dg or xg:
            for _ in range(2 if s > 1 else 3):
                if xg: mix += xg.pop(0)
            if dg: mix += dg.pop(0)
        if mix: G.spread(mix, g_first, 62)
        if s == 14: pend += publish_ops(BA, EXB_OFF, 'Bst', 208, 224)
        if s >= 27:
            lb = {27: [(0, XS2[26 % 4]), (1, XS2[26 % 4] + 16)], 28: [], 29: [(2, XS2[28 % 4]), (3, XS2[28 % 4] + 16)]}[s]
            gl = []
            for qq, l in lb:
                state.setdefault('LB', {})[qq] = l
                gl.append((f"s_add_u32 s86, s82, {EXB_OFF + qq*16384:#x}", {}))
                gl += [(f"buffer_load_dwordx4 v[{l+4*i}:{l+4*i+3}], v{VL16}, {R(WS)}, s86 offen offset:{i*1024} sc1", {}) for i in range(4)]
            if gl: G.spread(gl, 1, 40)
        if s == 28:
            xa = XRES + 16
            pre = [f"v_and_b32 v{xa}, 15, v{VLN}", f"v_lshlrev_b32 v{xa}, 11, v{xa}", f"v_lshrrev_b32 v{xa+1}, 4, v{VLN}",
                   f"v_lshl_add_u32 v{xa+2}, v{xa+1}, 3, v{xa}",
                   (f"s_lshl_b32 s54, s{sR}, 19", {}), (f"s_lshl_b32 s55, s{sQ}, 17", {}), ("s_add_u32 s54, s54, s55", {}),
                   (f"s_lshl_b32 s55, s{sW}, 15", {}), ("s_add_u32 s54, s54, s55", {}), (f"s_lshl_b32 s55, s{sTC}, 8", {}), ("s_add_u32 s54, s54, s55", {})]
            pre += [(f"buffer_load_dwordx2 v[{XRES+2*t}:{XRES+2*t+1}], v{xa+2}, {R(XS)}, s54 offen offset:{32*t}", {}) for t in range(8)]
            pre += [f"v_and_b32 v{xa+3}, 1, v{xa+1}", f"v_lshl_add_u32 v{xa}, v{xa+3}, 5, v{xa}", f"v_lshrrev_b32 v{xa+1}, 1, v{xa+1}",
                    f"v_lshl_add_u32 v{xa}, v{xa+1}, 4, v{xa}"]
            left = G.stream(pre, 0, 63); assert not left
        had = bool(pend)
        if pend:
            G.vmgap = opt.get('vmgap2', 2)
            nst = opt.get('nst', 3)
            for half in range(nst):
                now, later = limit(pend, 1)
                left = G.stream(now, half * 64 // nst, (half + 1) * 64 // nst - (1 if half == nst - 1 else 0))
                pend = left + later
        if had and not pend:
            if s < 14: state['oflag'] = s + 1
            elif s < SBP: state['bflag'] = s + 1
        prev_vm = G.last_vm()
        tx = lambda x: x[0] if isinstance(x, tuple) else x
        for g in range(G.n):
            if opt.get('no_st2'): G.mem[g] = [x for x in G.mem[g] if not tx(x).startswith('buffer_store_dwordx4')]
            if opt.get('no_va2'): G.valu[g] = [x for x in G.valu[g] if not tx(x).startswith(('v_accvgpr_read', 'v_mul_f32', 'v_cvt_pk'))]
            if opt.get('no_rd2'): G.valu[g] = [(tx(x).replace('v_accvgpr_read_b32', 'v_mov_b32').split(',')[0] + ', 1.0') if tx(x).startswith('v_accvgpr_read') else x for x in G.valu[g]]
            if opt.get('plain_st'): G.mem[g] = [((x[0].replace(' sc1', ''), x[1]) if tx(x).startswith('buffer_store_dwordx4') else x) for x in G.mem[g]]
        G.emit(P)
        if s in (3, 8, 13, 18, 23): stamp(f"p2_{s}")
    assert state['oflag'] < SO and state['bflag'] < SBP, (state['oflag'], state['bflag'])
    P.info = dict(oflag=state['oflag'], bflag=state['bflag'], pend_left=len(pend))
    emit_list(pend)
    stamp("p2_S")
    emit_list(publish_ops(SA, EXS_OFF, 'Sst', 208, 176))
    P.e(f"s_add_u32 s86, s83, {FL_SP:#x}\ns_add_u32 s55, s87, {FL_SP:#x}")
    stamp("s_issued")
    LB = state['LB']
    def gsum(qq):
        for k in range(16):
            l = LB[qq] + k
            if qq == 0: P.e(f"v_lshlrev_b32 v{GV+2*k}, 16, v{l}\nv_and_b32 v{GV+2*k+1}, s90, v{l}")
            else:
                t = 208 + (k % 4)*2
                P.e(f"v_lshlrev_b32 v{t}, 16, v{l}\nv_and_b32 v{t+1}, s90, v{l}\nv_pk_add_f32 v[{GV+2*k}:{GV+2*k+1}], v[{GV+2*k}:{GV+2*k+1}], v[{t}:{t+1}]")
    for qq in range(4): gsum(qq)
    P.e("s_barrier", needs=['Sst'])
    P.e(f"buffer_store_dword v{VNON}, v{VF}, {R(WS)}, s86 offen sc1")
    stamp("s_pub")
    P.e("s_mov_b32 s58, s59\ns_mov_b32 s56, 1.0\ns_mov_b32 s57, 1.0")
    for k0 in range(0, 32, 8):
        t = 208
        for k in range(0, 8, 2): P.e(f"v_pk_mul_f32 v[{t+k}:{t+k+1}], v[{GV+k0+k}:{GV+k0+k+1}], s[58:59]")
        for k in range(8): P.e(f"v_exp_f32 v{t+k}, v{t+k}")
        for k in range(0, 8, 2): P.e(f"v_pk_add_f32 v[{t+k}:{t+k+1}], v[{t+k}:{t+k+1}], s[56:57]")
        for k in range(8): P.e(f"v_rcp_f32 v{t+k}, v{t+k}")
        for k in range(0, 8, 2): P.e(f"v_pk_mul_f32 v[{GV+k0+k}:{GV+k0+k+1}], v[{GV+k0+k}:{GV+k0+k+1}], v[{t+k}:{t+k+1}]")
    for k in range(16): P.e(f"v_lshlrev_b32 v{176+2*k}, 16, v{XRES+k}\nv_and_b32 v{176+2*k+1}, s90, v{XRES+k}")
    stamp("g_done")
    P.e(f"s_cmp_lg_u32 s{sW}, 0\ns_cbranch_scc1 L_spjoin")
    P.e("L_sppoll:")
    P.e(f"buffer_load_dword v{VPOLL}, v{VP4}, {R(WS)}, s55 offen sc1")
    P.e("s_waitcnt vmcnt(0)")
    P.e(f"v_cmp_ne_u32 vcc, s{sN}, v{VPOLL}")
    P.e(f"s_add_u32 s100, s100, 1\ns_cmp_gt_u32 s100, {SPIN_MAX}\ns_cbranch_scc1 L_spjoin")
    P.e("s_cbranch_vccnz L_sppoll")
    P.e("L_spjoin:")
    P.e("s_waitcnt vmcnt(0)\ns_barrier")
    stamp("s_flag")
    L4 = [48, 64, 80, 96]
    assert XRES == 112
    for qq in range(4):
        P.e(f"s_add_u32 s86, s82, {EXS_OFF + qq*16384:#x}")
        for i in range(4): P.e(f"buffer_load_dwordx4 v[{L4[qq]+4*i}:{L4[qq]+4*i+3}], v{VL16}, {R(WS)}, s86 offen offset:{i*1024} sc1")
    SV = 144
    for qq in range(4):
        for k in range(16):
            l = L4[qq] + k
            if qq == 0: P.e(f"v_lshlrev_b32 v{SV+2*k}, 16, v{l}\nv_and_b32 v{SV+2*k+1}, s90, v{l}")
            else:
                t = 208 + (k % 4)*2
                P.e(f"v_lshlrev_b32 v{t}, 16, v{l}\nv_and_b32 v{t+1}, s90, v{l}\nv_pk_add_f32 v[{SV+2*k}:{SV+2*k+1}], v[{SV+2*k}:{SV+2*k+1}], v[{t}:{t+1}]")
    xa = XRES + 16
    for p in range(4):
        for k in range(4*p, 4*p+4):
            P.e(f"v_pk_fma_f32 v[{SV+2*k}:{SV+2*k+1}], v[{SV+2*k}:{SV+2*k+1}], v[{GV+2*k}:{GV+2*k+1}], v[{176+2*k}:{176+2*k+1}]")
        for k in range(4*p, 4*p+4): P.e(f"v_cvt_pk_bf16_f32 v{48+k}, v{SV+2*k}, v{SV+2*k+1}")
        q = 48 + 4*p
        P.e(f"v_permlane16_swap_b32 v{q}, v{q+2}\nv_permlane16_swap_b32 v{q+1}, v{q+3}")
        P.e(f"buffer_store_dwordx4 v[{q}:{q+3}], v{xa}, {R(OUT)}, s54 offen offset:{64*p}")
    if stamps:
        P.e("s_waitcnt vmcnt(0)")
        stamp("end")
        P.e(f"s_memrealtime s[98:99]\ns_waitcnt lgkmcnt(0)\nv_writelane_b32 v{VST}, s96, 30\nv_writelane_b32 v{VST}, s98, 31\nv_writelane_b32 v{VST}, s100, 29")
        P.e(f"s_lshl_b32 s58, s2, 2\ns_add_u32 s58, s58, s{sW}\ns_lshl_b32 s58, s58, 8\ns_add_u32 s58, s58, {TS_OFF:#x}\nv_lshlrev_b32 v24, 2, v{VLN}")
        P.e(f"buffer_store_dword v{VST}, v24, {R(WS)}, s58 offen")
    P.e("L_end:")
    P.e("s_endpgm")
    P.solve_waits()
    errs = P.check_dma()
    assert not errs, "\n".join(errs[:10])
    P.solve_hazards()
    Fb = Prog()
    Fb.e("L_fallback:")
    Fb.e("s_waitcnt vmcnt(0) lgkmcnt(0)\ns_barrier")
    Fb.e(f"v_and_b32 v24, 31, v{VLN}\nv_lshrrev_b32 v25, 5, v{VLN}\nv_bfe_u32 v26, v{VLN}, 2, 2")
    Fb.e(f"v_xor_b32 v27, v26, v25\nv_lshlrev_b32 v24, 6, v24\nv_lshl_add_u32 v{AK0}, v27, 4, v24\nv_xor_b32 v{AK1}, 32, v{AK0}")
    Fb.e(f"v_mov_b32 v{MX}, 0xff800000\nv_mov_b32 v{MX+1}, 0xff800000\ns_mov_b32 s51, s50\ns_mov_b32 s55, 8")
    Fb.e("L_fb_loop:")
    for cb in range(4):
        Fb.e(f"s_add_u32 m0, s91, {cb*4096 - 64*cb}\nbuffer_load_dwordx4 v{VDK}, {R(KS)}, s51 offen offset:{64*cb} lds")
    Fb.e("s_add_u32 s51, s51, 0x4000\ns_waitcnt vmcnt(0)\ns_barrier")
    for sub in range(2):
        for t in range(8):
            r = KVR + t*4
            Fb.e(f"ds_read_b128 a[{r}:{r+3}], v{AK0 if t % 2 == 0 else AK1} offset:{(t//2)*4096 + sub*2048}")
        for t in range(8):
            r = KVR + t*4
            for qt in range(2):
                s = S(sub, qt); q = QF + (qt*8+t)*4
                Fb.e(f"v_mfma_f32_32x32x16_bf16 v[{s}:{s+15}], a[{r}:{r+3}], v[{q}:{q+3}], " + (f"v[{s}:{s+15}]" if t else "0"))
        Fb.e("s_nop 7")
    for sub in range(2):
        for qt in range(2):
            s = S(sub, qt)
            for i in range(0, 16, 2): Fb.e(f"v_max3_f32 v{MX+qt}, v{MX+qt}, v{s+i}, v{s+i+1}")
    Fb.e("s_barrier\ns_sub_u32 s55, s55, 1\ns_cmp_lg_u32 s55, 0\ns_cbranch_scc1 L_fb_loop")
    for qt in range(2): Fb.e(f"v_mov_b32 v{TMP+qt}, v{MX+qt}")
    for qt in range(2): Fb.e(f"v_permlane32_swap_b32 v{MX+qt}, v{TMP+qt}")
    for qt in range(2): Fb.e(f"v_max_f32 v{MX+qt}, v{MX+qt}, v{TMP+qt}")
    Fb.e("s_mov_b32 s51, s50")
    for z in range(8):
        for x in kvdma(z): Fb.e(x[0])
    Fb.e("s_mov_b32 s95, 1\ns_waitcnt vmcnt(0)\ns_branch L_att_entry")
    Fb.solve_waits(); Fb.solve_hazards()
    text = P.text() + "\n" + "\n".join(spin) + "\n" + Fb.text() + "\nL_code_end:"
    return text, kd(name, 512, 256, 102), P
```

```python
XN_OFF = 0x0000000; XN_SIZE = 0x400000
H_OFF  = 0x0400000; H_SIZE  = 2048*3584*2
O_OFF  = 0x1200000; O_SIZE  = 2048*4096*2
EXB_OFF = 0x2200000; EXS_OFF = 0x3200000
FL_OFF = 0x4200000; FL_SIZE = 0x10000
TS_OFF = 0x4300000; TS_SIZE = 0x100000
WS_SIZE = 0x10000000
FL_EPOCH = FL_OFF
FL_LN = FL_OFF + 0x1000
FL_H  = FL_OFF + 0x2000
FL_O  = FL_OFF + 0x3000
FL_BP = FL_OFF + 0x4000
FL_SP = FL_OFF + 0x6000
EX_OFF = EXB_OFF; EX_SIZE = 128*2*32768
```

```python
import sys, json
from gen_mega import gen_mega, LDS_BYTES
HEADER = open("recurrent_scan__sliding_block_cached__glu_gated_glu__prompt.s.ref").read().split("; Override launch")[0]
KNAME = "recurrent_scan__sliding_block_cached__glu_gated_glu__prompt_kernel"

def assemble(kernels, launches, single=False):
    out = [HEADER.rstrip()]
    for (k, g, b, lds) in launches:
        if single: out.append(f"; @launch grid=({g},1,1) block=({b},1,1) lds={lds}")
        else: out.append(f"; @launch kernel={k} grid=({g},1,1) block=({b},1,1) lds={lds}")
    out.append('.amdgcn_target "amdgcn-amd-amdhsa--gfx950"')
    for name, (body, desc) in kernels.items():
        out.append(f".text\n.globl {name}\n.p2align 8\n.type {name},@function\n{name}:")
        out.append(body)
        out.append(desc)
    return "\n".join(out) + "\n"

def make(fn, stamps, single=False, opt=None):
    body, desc, P = gen_mega(KNAME, stamps=stamps, opt=opt)
    txt = assemble({KNAME: (body, desc)}, [(KNAME, 256, 256, LDS_BYTES)], single=single)
    open(fn, "w").write(txt)
    if stamps: json.dump(P.stamp_names, open(fn[:-2] + ".json", "w"))
    print(fn, len(txt), "bytes", P.info)

if __name__ == "__main__":
    if len(sys.argv) > 1:
        for a in sys.argv[1:]:
            opt = {}
            for k in a.split("+"):
                if k == "base": continue
                if "=" in k: kk, vv = k.split("="); opt[kk] = int(vv)
                else: opt[k] = True
            st = not opt.pop("nost", False)
            sg = opt.pop("single", False)
            make(f"x_{a.replace('+','_').replace('=','')}.s", (st and not sg) or bool(opt.get('dbg')), single=sg, opt=opt)
    else:
        make("mega_ts.s", True)
        make("mega.s", False)
        make("mega_single.s", False, single=True)
```

```python
from asmfw import *
from layout import *
import struct, math

def f32(x): return struct.unpack('<I', struct.pack('<f', x))[0]
LOG2E = f32(math.log2(math.e))
NLOG2E = LOG2E ^ 0x80000000
QSCALE = f32(math.log2(math.e) / math.sqrt(128.0))
SLOT = 24576
NSLOT = 6
LDS_BYTES = 163840
def z_base(z): return (z % 10) * 16384
def z_rng(z): return (z_base(z), z_base(z) + 16384)
SPIN_MAX = 0x80000
OOB = 0x7ff00000
DROP = 0x30000

WS, WQ, GU, KS, VS, XS, WD, WO, OUT = 8, 12, 16, 20, 24, 28, 32, 36, 40
def R(b): return f"s[{b}:{b+3}]"
sW, sJ, sR, sQ, sTC, sN = 44, 45, 46, 47, 48, 49

def srd(P, d, lo, size):
    P.e(f"s_mov_b64 s[{d}:{d+1}], s[{lo}:{lo+1}]\ns_mov_b32 s{d+2}, {size:#x}\ns_mov_b32 s{d+3}, 0x20000")

def allsum2(P, regs, tmps):
    for m in ("quad_perm:[1,0,3,2]", "quad_perm:[2,3,0,1]", "row_half_mirror", "row_mirror"):
        for v in regs: P.e(f"v_add_f32 v{v}, v{v}, v{v} {m} row_mask:0xf bank_mask:0xf")
    for sw in ("v_permlane16_swap_b32", "v_permlane32_swap_b32"):
        for v, t in zip(regs, tmps): P.e(f"v_mov_b32 v{t}, v{v}")
        for v, t in zip(regs, tmps): P.e(f"{sw} v{v}, v{t}")
        for v, t in zip(regs, tmps): P.e(f"v_add_f32 v{v}, v{v}, v{t}")

def mixin(P, main, side, every):
    side = list(side)
    for n, x in enumerate(main):
        if n % every == 0 and side:
            for y in side.pop(0): P.e(y[0], **y[1])
        P.e(x) if isinstance(x, str) else P.e(x[0], **x[1])
    for g in side:
        for y in g: P.e(y[0], **y[1])

def groups(ops):
    out, cur = [], []
    for x in ops:
        cur.append(x)
        if x[0].startswith('buffer_'): out.append(cur); cur = []
    if cur: out[-1] += cur
    return out

def gen_mega(name="mega_kernel", stamps=False, opt=None):
    opt = opt or {}
    P = Prog()
    nstamp = [0]
    VST = 3
    P.stamp_names = []
    def stamp(label):
        if not stamps: return
        P.e(f"s_memtime s[98:99]\ns_waitcnt lgkmcnt(0)\nv_writelane_b32 v{VST}, s98, {nstamp[0]}")
        P.stamp_names.append(label); nstamp[0] += 1
    def emit_list(l):
        for x in l: P.e(x) if isinstance(x, str) else P.e(x[0], **x[1])
    QA, UA = 0, 128
    GA, XR, WR = 144, 80, 48
    VL16, VLN = 1, 2
    VX = 4
    VDQ, VDG, VDS = 5, 6, 7
    AP0, AP1, AS = 8, 9, 10
    VDK, VDV = 11, 12
    AK0, AK1, AV = 13, 14, 15
    LN0 = 16
    VH0, VH1, VO, VF = 20, 21, 22, 23
    TMP = 24
    VD = 32
    AW = 36
    MX = 44
    VNON, VPOLL = 46, 47
    QF, SB, PB, NM = 80, 144, 208, 48
    KVR = 128
    P.e(f"s_cmp_ge_u32 s2, 256\ns_cbranch_scc1 L_end")
    P.e("s_load_dwordx8 s[60:67], s[0:1], 0")
    P.e("s_load_dwordx2 s[70:71], s[0:1], 88")
    P.e("s_load_dwordx8 s[72:79], s[0:1], 48")
    P.e("s_load_dwordx2 s[68:69], s[0:1], 32")
    P.e("s_getpc_b64 s[4:5]\nL_pc:")
    if stamps:
        P.e(f"s_memrealtime s[96:97]\nv_mov_b32 v{VST}, 0")
        stamp("entry")
    P.e(f"v_lshrrev_b32 v24, 6, v0\nv_and_b32 v{VLN}, 63, v0\nv_lshlrev_b32 v{VL16}, 4, v{VLN}")
    P.e(f"v_readfirstlane_b32 s{sW}, v24")
    P.e("s_and_b32 s50, s2, 7\ns_lshr_b32 s51, s2, 3")
    P.e(f"s_and_b32 s{sR}, s50, 1\ns_lshl_b32 s{sR}, s{sR}, 2\ns_lshr_b32 s52, s51, 3\ns_add_u32 s{sR}, s{sR}, s52")
    P.e(f"s_lshr_b32 s{sQ}, s50, 1\ns_and_b32 s{sTC}, s51, 7\ns_lshl_b32 s{sJ}, s{sQ}, 3\ns_add_u32 s{sJ}, s{sJ}, s{sTC}")
    P.e(f"s_lshl_b32 s50, s{sR}, 8\ns_lshl_b32 s52, s{sJ}, 3\ns_add_u32 s50, s50, s52")
    P.e(f"s_lshl_b32 s52, s{sW}, 1\ns_add_u32 s52, s52, s50\ns_lshl_b32 s52, s52, 11")
    P.e(f"s_mov_b32 s{XS+2}, 0x400000\ns_mov_b32 s{XS+3}, 0x20000\ns_mov_b32 s{WS+2}, {WS_SIZE:#x}\ns_mov_b32 s{WS+3}, 0x20000")
    P.e("s_mov_b32 s6, L_code_end-L_pc\ns_mov_b32 s7, 0x20000\ns_lshl_b32 s51, s51, 15")
    P.e(f"v_lshlrev_b32 v25, 7, v0\nv_mov_b32 v28, 0\ns_lshl_b32 s53, s{sR}, 7\ns_add_u32 s54, s53, {FL_EPOCH:#x}")
    P.e("s_waitcnt lgkmcnt(0)")
    stamp("karg")
    P.e(f"s_mov_b64 s[{XS}:{XS+1}], s[60:61]\ns_mov_b64 s[{WS}:{WS+1}], s[70:71]")
    LX = 144
    for e in range(2):
        for i in range(2):
            P.e(f"buffer_load_dwordx4 v[{LX+e*8+4*i}:{LX+e*8+4*i+3}], v{VL16}, {R(XS)}, s52 offen offset:{e*2048+i*1024}")
    P.e(f"buffer_load_dword v29, v28, {R(WS)}, s54 offen sc1")
    P.e(f"buffer_load_dword v47, v25, s[4:7], s51 offen")
    def slot_adv():
        return [(f"s_add_u32 s86, s86, {SLOT}", {}), (f"s_cmp_eq_u32 s86, {SLOT*NSLOT}", {}), (f"s_cselect_b32 s86, 0, s86", {})]
    def wdma(tag, slot):
        kw = dict(tag=tag, slot=slot)
        g = [("s_add_u32 s88, s86, s80", {}), ("s_add_u32 s89, s86, s81", {})]
        for b in range(2):
            g += [(f"s_add_u32 m0, s88, {b*2048 - 64*b}", {}), (f"buffer_load_dwordx4 v{VDQ}, {R(WQ)}, s83 offen offset:{64*b} lds", kw)]
        for b in range(3):
            g += [(f"s_add_u32 m0, s89, {b*2048 - 64*b}", {}), (f"buffer_load_dwordx4 v{VDG}, {R(GU)}, s84 offen offset:{64*b} lds", kw)]
        g += [("s_add_u32 m0, s86, s82", {}), (f"buffer_load_dwordx4 v{VDS}, {R(GU)}, s84 offen lds", kw)]
        g += [("s_add_u32 s83, s83, 0x40000", {}), (f"s_add_u32 s84, s84, {32*7168:#x}", {})]
        return g
    def wrng(step): return ((step % NSLOT)*SLOT, (step % NSLOT)*SLOT + SLOT) if step < 32 else (DROP + step*SLOT, DROP + step*SLOT + SLOT)
    P.e(f"v_lshrrev_b32 v25, 2, v{VLN}\nv_and_b32 v26, 3, v{VLN}\ns_mov_b32 s90, 0xffff0000")
    F = [176, 192]
    SM, VR, T1 = [208, 210], [212, 214], [216, 218]
    pk = lambda r: f"v[{r}:{r+1}]"
    LNP = Prog()
    for e in range(2):
        for i in range(8): LNP.e(f"v_lshlrev_b32 v{F[e]+2*i}, 16, v{LX+e*8+i}\nv_and_b32 v{F[e]+2*i+1}, s90, v{LX+e*8+i}")
    for e in range(2): LNP.e(f"v_pk_add_f32 {pk(SM[e])}, {pk(F[e])}, {pk(F[e]+2)}")
    for i in range(2, 8):
        for e in range(2): LNP.e(f"v_pk_add_f32 {pk(SM[e])}, {pk(SM[e])}, {pk(F[e]+2*i)}")
    for e in range(2): LNP.e(f"v_add_f32 v{SM[e]}, v{SM[e]}, v{SM[e]+1}")
    allsum2(LNP, SM, T1)
    for e in range(2): LNP.e(f"v_mul_f32 v{SM[e]}, 0xba800000, v{SM[e]}")
    for e in range(2): LNP.e(f"v_mov_b32 v{SM[e]+1}, v{SM[e]}")
    for i in range(8):
        for e in range(2): LNP.e(f"v_pk_add_f32 {pk(T1[e])}, {pk(F[e]+2*i)}, {pk(SM[e])}")
        for e in range(2): LNP.e(f"v_pk_mul_f32 {pk(VR[e])}, {pk(T1[e])}, {pk(T1[e])}" if i == 0 else f"v_pk_fma_f32 {pk(VR[e])}, {pk(T1[e])}, {pk(T1[e])}, {pk(VR[e])}")
    for e in range(2): LNP.e(f"v_add_f32 v{VR[e]}, v{VR[e]}, v{VR[e]+1}")
    allsum2(LNP, VR, T1)
    for e in range(2): LNP.e(f"v_mul_f32 v{VR[e]}, 0x3a800000, v{VR[e]}")
    for e in range(2): LNP.e(f"v_cvt_pk_bf16_f32 v{T1[e]}, v{SM[e]}, v{VR[e]}")
    for e in range(2): LNP.e(f"v_lshlrev_b32 v{SM[e]}, 16, v{T1[e]}\nv_and_b32 v{VR[e]}, s90, v{T1[e]}")
    for op in ("v_add_f32 v{v}, 0x3727c5ac, v{v}", "v_cvt_pk_bf16_f32 v{v}, v{v}, v{v}", "v_and_b32 v{v}, s90, v{v}", "v_sqrt_f32 v{v}, v{v}",
               "v_cvt_pk_bf16_f32 v{v}, v{v}, v{v}", "v_and_b32 v{v}, s90, v{v}", "v_rcp_f32 v{v}, v{v}"):
        for e in range(2): LNP.e(op.format(v=VR[e]))
    for e in range(2): LNP.e(f"v_mov_b32 v{SM[e]+1}, v{SM[e]}\nv_mov_b32 v{VR[e]+1}, v{VR[e]}")
    PO = 160
    for i in range(8):
        for e in range(2): LNP.e(f"v_pk_add_f32 {pk(F[e]+2*i)}, {pk(F[e]+2*i)}, {pk(SM[e])}")
        for e in range(2): LNP.e(f"v_cvt_pk_bf16_f32 v{PO+e*8+i}, v{F[e]+2*i}, v{F[e]+2*i+1}")
        for e in range(2): LNP.e(f"v_lshlrev_b32 v{F[e]+2*i}, 16, v{PO+e*8+i}\nv_and_b32 v{F[e]+2*i+1}, s90, v{PO+e*8+i}")
        for e in range(2): LNP.e(f"v_pk_mul_f32 {pk(F[e]+2*i)}, {pk(F[e]+2*i)}, {pk(VR[e])}")
        for e in range(2): LNP.e(f"v_cvt_pk_bf16_f32 v{PO+e*8+i}, v{F[e]+2*i}, v{F[e]+2*i+1}")
    lnops = [i.text for i in LNP.flat()]
    nq = len(lnops)
    cuts = [0, 48, 48 + (nq-48)//3, 48 + 2*(nq-48)//3, nq]
    LNB = SLOT * NSLOT
    P.e(f"v_and_b32 v24, 1, v{VLN}\nv_and_b32 v27, 3, v25\nv_lshl_add_u32 v27, v24, 2, v27")
    P.e(f"s_lshl_b32 s57, s{sW}, 1\nv_xor_b32 v27, s57, v27")
    P.e(f"v_lshlrev_b32 v30, 9, v25\nv_lshl_add_u32 v30, v24, 8, v30\nv_bfe_u32 v24, v{VLN}, 1, 1\nv_lshl_add_u32 v30, v24, 3, v30")
    P.e(f"v_add_u32 v30, {LNB}, v30\nv_lshl_add_u32 v{AP0}, v27, 4, v30\nv_xor_b32 v{AP1}, 16, v{AP0}")
    P.e(f"v_lshlrev_b32 v{AS}, 4, v0\nv_add_u32 v{AS}, {LNB}, v{AS}")
    P.e("v_lshrrev_b32 v24, 5, v0\nv_bfe_u32 v27, v0, 3, 2\nv_and_b32 v30, 3, v24\nv_bfe_u32 v31, v0, 4, 1\nv_lshl_add_u32 v30, v31, 2, v30")
    P.e(f"v_and_b32 v31, 7, v0\nv_xor_b32 v30, v30, v31\nv_lshlrev_b32 v{VX}, 17, v24\nv_lshl_add_u32 v{VX}, v27, 8, v{VX}\nv_lshl_add_u32 v{VX}, v30, 4, v{VX}")
    P.e("s_lshr_b32 s51, s50, 4\ns_lshl_b32 s51, s51, 10\ns_and_b32 s56, s50, 15\ns_lshl_b32 s56, s56, 4\ns_add_u32 s51, s51, s56")
    if XN_OFF: P.e(f"s_add_u32 s51, s51, {XN_OFF:#x}")
    srd(P, WQ, 66, 1024*4096*2)
    P.e(f"s_cmp_lt_u32 s{sW}, 2\ns_cselect_b32 s{GU}, s72, s74\ns_cselect_b32 s{GU+1}, s73, s75")
    P.e(f"s_mov_b32 s{GU+2}, {1024*3584*2:#x}\ns_mov_b32 s{GU+3}, 0x20000")
    P.e(f"s_and_b32 s54, s{sW}, 1\ns_lshr_b32 s55, s{sW}, 1")
    P.e("s_lshl_b32 s56, s54, 4\nv_add_u32 v24, s56, v25")
    P.e(f"v_bfe_u32 v30, v{VLN}, 4, 1\nv_lshlrev_b32 v30, 1, v30\nv_xor_b32 v30, v30, v26\nv_lshlrev_b32 v30, 4, v30")
    P.e(f"v_lshl_add_u32 v{VDQ}, v24, 13, v30")
    P.e(f"s_lshl_b32 s56, s{sJ}, 8\ns_lshl_b32 s57, s55, 7\ns_add_u32 s56, s56, s57\nv_add_u32 v{VDQ}, s56, v{VDQ}")
    P.e("s_movk_i32 s58, 7168\nv_mul_lo_u32 v27, v24, s58")
    P.e(f"s_mul_i32 s56, s{sJ}, 224\ns_and_b32 s59, s{sJ}, 1\ns_lshl_b32 s57, s59, 5\ns_add_u32 s57, s57, s56")
    P.e(f"v_add3_u32 v{VDG}, v27, v30, s57")
    P.e(f"v_bfe_u32 v24, v{VLN}, 1, 4\ns_lshl_b32 s57, s54, 4\nv_add_u32 v24, s57, v24\nv_mul_lo_u32 v27, v24, s58")
    P.e(f"v_and_b32 v30, 1, v{VLN}\nv_lshlrev_b32 v30, 4, v30")
    P.e("s_cmp_eq_u32 s59, 0\ns_cselect_b32 s57, 192, 0\ns_add_u32 s57, s57, s56")
    P.e(f"v_add3_u32 v{VDS}, v27, v30, s57")
    P.e(f"v_mov_b32 v30, {OOB:#x}\nv_cmp_gt_u32 vcc, 32, v{VLN}\nv_cndmask_b32 v{VDS}, v30, v{VDS}, vcc")
    P.e("s_lshl_b32 s80, s55, 12\ns_lshl_b32 s57, s54, 10\ns_add_u32 s80, s80, s57")
    P.e("s_lshl_b32 s81, s55, 13\ns_add_u32 s81, s81, 8192\ns_add_u32 s81, s81, s57\ns_add_u32 s82, s81, 6144")
    P.e(f"s_mov_b32 s83, 0\ns_mov_b32 s84, 0\ns_mov_b32 s85, {XN_OFF:#x}\ns_mov_b32 s86, 0\ns_mov_b32 s87, 0")
    dm = []
    for st in range(4): dm += wdma(('W', st), wrng(st)) + slot_adv()
    dmg = groups(dm)
    for g in dmg[:opt.get('early', 8)]: emit_list(g)
    if opt.get('dry', False):
        P.e(f"s_cmp_eq_u32 s{sW}, 1\ns_cbranch_scc1 L_lnq1\ns_cmp_eq_u32 s{sW}, 2\ns_cbranch_scc1 L_lnq2\ns_cmp_eq_u32 s{sW}, 3\ns_cbranch_scc1 L_lnq3")
    P.e("L_lnreal:")
    P.e("s_cmp_eq_u32 s90, 0")
    stamp("issued")
    for qd in range(4):
        if qd: P.e(f"L_lnq{qd}:")
        for x in lnops[cuts[qd]:cuts[qd+1]]: P.e(x)
        if qd: P.e("s_cbranch_scc1 L_lnreal")
    for e in range(2):
        b = PO + e*8
        P.e(f"ds_write2_b64 v{AP0+e}, v[{b}:{b+1}], v[{b+2}:{b+3}] offset0:0 offset1:16")
        P.e(f"ds_write_b64 v{AP0+e}, v[{b+4}:{b+5}] offset:8192\nds_write_b64 v{AP0+e}, v[{b+6}:{b+7}] offset:8320")
    P.e(f"v_readfirstlane_b32 s57, v29")
    P.e(f"v_mov_b32 v30, {OOB:#x}\nv_cmp_eq_u32 vcc, 0, v0\nv_cndmask_b32 v{VF}, v30, v28, vcc")
    P.e("s_waitcnt lgkmcnt(0)\ns_barrier")
    for i in range(4): P.e(f"ds_read_b128 v[{LX+4*i}:{LX+4*i+3}], v{AS} offset:{i*4096}")
    P.e(f"s_mul_i32 s{sN}, s57, 0x9e3779b1\ns_xor_b32 s{sN}, s{sN}, 0x5bd1e995\ns_add_u32 s57, s57, 1")
    P.e(f"v_mov_b32 v{VNON}, s{sN}\nv_mov_b32 v29, s57")
    for i in range(4):
        P.e(f"buffer_store_dwordx4 v[{LX+4*i}:{LX+4*i+3}], v{VX}, {R(WS)}, s51 offen sc1")
        if i < 3: P.e("s_add_u32 s51, s51, 0x100000")
    stamp("ln_stored")
    P.e(f"s_lshl_b32 s56, s{sJ}, 2\ns_add_u32 s56, s56, s53\ns_add_u32 s56, s56, {FL_LN:#x}")
    P.e("s_waitcnt vmcnt(0)\ns_barrier")
    P.e(f"buffer_store_dword v{VNON}, v{VF}, {R(WS)}, s56 offen sc1")
    stamp("ln_flag")
    srd(P, KS, 62, 0x200000); srd(P, VS, 64, 0x200000); srd(P, WD, 76, 3584*2048); srd(P, WO, 68, 4096*2048); srd(P, OUT, 78, 0x400000)
    st2 = []
    st2 += f"s_lshl_b32 s56, s{sR}, 2|s_add_u32 s56, s56, s{sW}|s_lshl_b32 s56, s56, 12|v_add_u32 v{VX}, s56, v{VL16}".split('|')
    st2 += f"v_lshrrev_b32 v24, 4, v{VLN}|v_bfe_u32 v25, v{VLN}, 2, 2".split('|')
    st2 += "v_lshl_add_u32 v27, v24, 2, v25|v_lshlrev_b32 v30, 6, v27|v_lshl_add_u32 v30, v26, 3, v30".split('|')
    st2 += f"v_and_b32 v31, 1, v24|v_lshl_add_u32 v{AP0}, v31, 5, v30|v_xor_b32 v{AP1}, 32, v{AP0}|v_lshlrev_b32 v{AS}, 3, v{VLN}".split('|')
    st2 += "v_and_b32 v31, 7, v27|v_lshlrev_b32 v30, 8, v27|v_lshl_add_u32 v30, v26, 3, v30|v_lshl_add_u32 v30, v31, 5, v30".split('|')
    st2.append(f"v_add_u32 v30, {z_base(16)}, v30")
    for t in range(8): st2.append(f"v_xor_b32 v{AW+t}, {t*32}, v30")
    st2 += f"v_lshrrev_b32 v27, 2, v{VLN}|s_lshl_b32 s56, s{sW}, 4|v_add_u32 v27, s56, v27|v_lshlrev_b32 v27, 8, v27".split('|')
    st2 += f"v_lshl_add_u32 v{VDV}, v26, 4, v27|v_xor_b32 v31, v24, v26|v_lshl_add_u32 v{VDK}, v31, 4, v27".split('|')
    st2 += f"s_lshl_b32 s91, s{sW}, 10|s_lshl_b32 s92, s{sW}, 12".split('|')
    st2 += f"v_add_u32 v27, s56, v24|v_and_b32 v30, 15, v{VLN}|v_lshlrev_b32 v31, 1, v24|v_xor_b32 v30, v30, v31|v_xor_b32 v31, 8, v30".split('|')
    st2 += f"s_lshl_b32 s57, s{sTC}, 8|v_lshlrev_b32 v27, 11, v27|v_add_u32 v27, s57, v27".split('|')
    st2 += f"v_lshl_add_u32 v{VD}, v30, 4, v27|v_lshl_add_u32 v{VD+1}, v31, 4, v27|v_add_u32 v{VD+1}, 0x2000, v{VD+1}".split('|')
    st2 += f"v_add_u32 v{VD+2}, 0x4000, v{VD}|v_add_u32 v{VD+3}, 0x4000, v{VD+1}".split('|')
    st2 += f"s_lshl_b32 s56, s{sR}, 3|s_lshl_b32 s57, s{sW}, 1|s_add_u32 s56, s56, s57|s_lshl_b32 s56, s56, 12".split('|')
    st2 += f"v_add_u32 v{VH0}, s56, v{VL16}|v_add_u32 v{VH1}, 0x1000, v{VH0}".split('|')
    st2 += f"v_and_b32 v27, 15, v{VLN}|v_lshlrev_b32 v27, 4, v27|v_and_b32 v30, 1, v24|v_lshl_add_u32 v27, v30, 10, v27".split('|')
    st2 += f"v_lshrrev_b32 v30, 5, v{VLN}|v_lshl_add_u32 v27, v30, 8, v27|v_add_u32 v{VO}, s56, v27".split('|')
    st2 += f"s_mov_b32 s93, {(-(NSLOT-1)*SLOT) & 0xffffffff:#x}|s_mov_b32 s94, {SLOT}|s_mov_b32 s100, 0|s_mov_b32 s95, 0".split('|')
    st2 += f"s_lshl_b32 s50, s{sQ}, 19|s_add_u32 s50, s50, {1536*256:#x}|s_mul_i32 s52, s{sQ}, {896*2048:#x}".split('|')
    st2 += [f"v_mov_b32 v{WR+i}, 0" for i in range(4)]
    mixin(P, st2, dmg[opt.get('early', 8):], 4)
    ZR = f"v[{WR}:{WR+3}]"
    for i in range(15): P.e(f"v_mfma_f32_32x32x16_bf16 a[{16*i}:{16*i+15}], {ZR}, {ZR}, 0")
    for i in range(7): P.e(f"v_mfma_f32_32x32x16_bf16 v[{GA+16*i}:{GA+16*i+15}], {ZR}, {ZR}, 0")
    stamp("setup")
    P.e(f"s_cmp_lg_u32 s{sW}, 0\ns_cbranch_scc1 L_lnjoin")
    P.e(f"v_and_b32 v27, 31, v{VLN}\nv_lshlrev_b32 v27, 2, v27\ns_add_u32 s56, s53, {FL_LN:#x}")
    P.e("L_lnpoll:")
    P.e(f"buffer_load_dword v{VPOLL}, v27, {R(WS)}, s56 offen sc1")
    P.e("s_waitcnt vmcnt(0)")
    P.e(f"v_cmp_ne_u32 vcc, s{sN}, v{VPOLL}")
    P.e(f"s_add_u32 s100, s100, 1\ns_cmp_gt_u32 s100, {SPIN_MAX}\ns_cbranch_scc1 L_lnjoin")
    P.e("s_cbranch_vccnz L_lnpoll")
    P.e("L_lnjoin:")
    P.e("s_waitcnt vmcnt(0)\ns_barrier")
    stamp("ln_done")
    def xload(st):
        return [(f"buffer_load_dwordx4 v[{XR+st*16+4*f}:{XR+st*16+4*f+3}], v{VX}, {R(WS)}, s85 offen offset:{1024*f}", {}) for f in range(4)] + \
               [("s_add_u32 s85, s85, 0x20000", {})]
    for st in range(3): emit_list(xload(st))
    P.e(f"s_add_u32 s56, s53, {FL_EPOCH:#x}\ns_cmp_eq_u32 s{sJ}, 0\ns_cselect_b32 s56, s56, {OOB:#x}\ns_lshl_b32 s53, s{sQ}, 21")
    P.e(f"buffer_store_dword v29, v{VF}, {R(WS)}, s56 offen sc1")

    tiles = [('q', t) for t in range(8)] + [('g', t) for t in range(7)] + [('u', t) for t in range(7)]
    NT = len(tiles)
    def acc(kind, t, mt):
        if kind == 'q': b = QA + (t*4+mt)*4; return f"a[{b}:{b+3}]"
        if kind == 'g': b = GA + (t*4+mt)*4; return f"v[{b}:{b+3}]"
        b = UA + (t*4+mt)*4; return f"a[{b}:{b+3}]"
    def wread(f, ring, tag):
        kind, t = tiles[f]
        base = {'q': 0, 'g': 8192, 'u': 16384}[kind]
        r = WR + ring*4
        if kind != 'q' and t == 6: a, off = AS, base + 6144
        else: a, off = (AP0 if t % 2 == 0 else AP1), base + (t//2)*2048
        return [(f"ds_read_b64_tr_b16 v[{r}:{r+1}], v{a} offset:{off}", dict(tag=tag)),
                (f"ds_read_b64_tr_b16 v[{r+2}:{r+3}], v{a} offset:{off+1024}", dict(tag=tag))]
    LEAD, DAH = 5, 4
    for f in range(LEAD): emit_list(wread(f, f % 8, ('W', 0)))
    def kstep(st):
        stepfn = lambda k: k*4 + st
        tg = lambda d: (lambda k: ('W', stepfn(k) + d))
        tgr = lambda d: (lambda k: ('W', stepfn(k) + d) if stepfn(k) + d < 32 else None)
        ring0 = (st * NT) % 8
        mf = []
        for f in range(NT):
            kind, t = tiles[f]
            wr = WR + ((ring0 + f) % 8) * 4
            for mt in range(4):
                xr = XR + st*16 + mt*4
                kw = {}
                if f == 0 and mt == 0: kw = dict(rdx=f"v[{XR+st*16}:{XR+st*16+15}]")
                elif f % 2 == 1 and mt == 0 and f + 1 < NT:
                    w2 = WR + ((ring0 + f + 1) % 8) * 4; kw = dict(rdx=f"v[{w2}:{w2+3}]")
                a = acc(kind, t, mt)
                mf.append((f"v_mfma_f32_16x16x32_bf16 {a}, v[{wr}:{wr+3}], v[{xr}:{xr+3}], {a}", kw))
        G = Gaps(mf, False)
        for f in range(1, NT, 2): G.resv[4*f-1] = 1
        G.resv[87] = 1
        for f in range(NT):
            ff = f + LEAD
            rd = wread(ff, (ring0 + ff) % 8, tg(0)) if ff < NT else wread(ff-NT, (ring0 + ff) % 8, tgr(1))
            G.put(4*f, rd[0]); G.put(4*f+2, rd[1])
        G.put(53, [(f"s_add_u32 s87, s87, {SLOT}", {}), (f"s_cmp_eq_u32 s87, {SLOT*NSLOT}", {}), ("s_cselect_b32 s87, 0, s87", {}), ("s_cselect_b32 s54, s93, s94", {})])
        G.put(61, f"v_add_u32 v{AP0}, s54, v{AP0}"); G.put(65, f"v_add_u32 v{AP1}, s54, v{AP1}"); G.put(69, f"v_add_u32 v{AS}, s54, v{AS}")
        G.put(4*(NT-LEAD)-1, ("s_barrier", dict(needs=lambda k: [('W', stepfn(k) + 1)])))
        G.put(81, slot_adv())
        G.put(83, [("s_cmp_ge_u32 s83, 0x800000", {}), (f"s_cselect_b32 s86, {DROP:#x}, s86", {})])
        G.put(85, [(f"s_cmp_ge_u32 s85, {XN_OFF+XN_SIZE:#x}", {}), (f"s_cselect_b32 s85, {OOB:#x}, s85", {})])
        wd = wdma(tg(DAH), lambda k: wrng(stepfn(k) + DAH))
        xl = xload((st+3) % 4)
        ops = wd[:6] + xl[:1] + wd[6:8] + xl[1:2] + wd[8:10] + xl[2:3] + wd[10:12] + xl[3:] + wd[12:]
        if st == 1: ops += [(f"buffer_load_dword v{TMP}, v0, s[4:7], s57 offen", {})]
        if st == 2: ops += [(f"buffer_load_dword v{TMP+1}, v0, s[60:63], s65 offen", {})]
        G.spread(ops, 0, 78)
        if st == 0: G.put(86, ["s_cmp_eq_u32 s55, 2", f"s_cselect_b32 s57, s56, {OOB:#x}", f"s_cselect_b32 s65, s64, {OOB:#x}"])
        return G
    P.e(f"v_lshlrev_b32 v0, 7, v0\ns_mov_b32 s56, L_glu-L_pc\ns_cmp_eq_u32 s{sTC}, 0\ns_cselect_b32 s56, s56, {OOB:#x}\ns_mov_b32 s55, 8")
    P.e(f"s_cmp_lt_u32 s{sTC}, 4\ns_cselect_b32 s60, s{KS}, s{VS}\ns_cselect_b32 s61, s{KS+1}, s{VS+1}\ns_mov_b32 s62, 0x200000\ns_mov_b32 s63, 0x20000")
    P.e(f"s_and_b32 s64, s{sTC}, 3\ns_lshl_b32 s64, s64, 15\ns_add_u32 s64, s64, s50\ns_and_b32 s65, s{sR}, 3\ns_cmp_eq_u32 s65, 0\ns_cselect_b32 s64, s64, {OOB:#x}")
    P.e("L_kloop:")
    P.loop_begin(8)
    for st in range(4):
        G = kstep(st)
        if st == 3: G.put(86, ["s_sub_u32 s55, s55, 1", "s_cmp_lg_u32 s55, 0"])
        G.emit(P)
    P.e("s_cbranch_scc1 L_kloop")
    P.loop_end()
    stamp("kloop")
    def kvdma(z, dyn=False, tag=None, slot=None, lo=0):
        isv = z % 2
        kw = dict(tag=tag or ('Z', z), slot=slot or z_rng(z))
        g = []
        if dyn: g.append(("s_add_u32 s88, s86, s91", {}))
        for cb in range(4):
            m0 = f"s_add_u32 m0, s88, {lo + cb*4096 - 64*cb}" if dyn else f"s_add_u32 m0, s91, {z_base(z) + cb*4096 - 64*cb}"
            g += [(m0, {}), (f"buffer_load_dwordx4 v{VDV if isv else VDK}, {R(VS if isv else KS)}, s51 offen offset:{64*cb} lds", kw)]
        if isv: g.append(("s_add_u32 s51, s51, 0x4000", {}))
        return g
    def zadv(): return [("s_add_u32 s86, s86, 0x4000", {}), (f"s_cmp_eq_u32 s86, {LDS_BYTES}", {}), ("s_cselect_b32 s86, 0, s86", {})]
    P.e("L_glu:\ns_waitcnt lgkmcnt(0)\ns_barrier\ns_mov_b32 s51, s50")
    P.e(f"s_lshr_b32 s54, s{sJ}, 1\ns_mul_i32 s54, s54, 7\ns_lshl_b32 s55, s59, 2\ns_add_u32 s55, s55, s54")
    def ktoff(dst, ktreg):
        P.e(f"s_lshr_b32 s56, {ktreg}, 1\ns_lshl_b32 s56, s56, 18\ns_and_b32 s57, {ktreg}, 1\ns_lshl_b32 s57, s57, 11\ns_add_u32 s{dst}, s56, s57\ns_add_u32 s{dst}, s{dst}, {H_OFF:#x}")
    kvg = groups([x for z in range(4) for x in kvdma(z)])
    for p in range(3):
        ktoff(83+p, "s55"); P.e("s_add_u32 s55, s55, 1")
        emit_list(kvg.pop(0))
    P.e("s_add_u32 s54, s54, 3"); ktoff(87, "s54")
    P.e("s_lshl_b32 s56, s59, 3\ns_add_u32 s87, s87, s56")
    P.e(f"s_mov_b32 s54, {NLOG2E:#x}\ns_mov_b32 s55, {NLOG2E:#x}\ns_mov_b32 s56, 1.0\ns_mov_b32 s57, 1.0")
    HT = WR
    def glu(t, mt, dst, e):
        g = GA + (t*4+mt)*4; u = UA + (t*4+mt)*4
        s1 = [f"v_pk_mul_f32 v[{e}:{e+1}], v[{g}:{g+1}], s[54:55]", f"v_pk_mul_f32 v[{e+2}:{e+3}], v[{g+2}:{g+3}], s[54:55]"]
        s1 += [f"v_accvgpr_read_b32 v{e+4+i}, a{u+i}" for i in range(4)]
        s2 = [f"v_exp_f32 v{e+i}, v{e+i}" for i in range(4)]
        s3 = [f"v_pk_add_f32 v[{e}:{e+1}], v[{e}:{e+1}], s[56:57]", f"v_pk_add_f32 v[{e+2}:{e+3}], v[{e+2}:{e+3}], s[56:57]"]
        s4 = [f"v_rcp_f32 v{e+i}, v{e+i}" for i in range(4)]
        s5 = [f"v_pk_mul_f32 v[{e}:{e+1}], v[{e}:{e+1}], v[{e+4}:{e+5}]", f"v_pk_mul_f32 v[{e+2}:{e+3}], v[{e+2}:{e+3}], v[{e+6}:{e+7}]"]
        s6 = [f"v_cvt_pk_bf16_f32 v{dst}, v{e}, v{e+1}", f"v_cvt_pk_bf16_f32 v{dst+1}, v{e+2}, v{e+3}"]
        return [s1, s2, s3, s4, s5, s6]
    n = 0
    hst = []
    units = [(p, mt) for p in (2, 1, 0, 3) for mt in range(4)]
    for un, (p, mt) in enumerate(units):
        ts = [2*p, 2*p+1] if p < 3 else [6]
        dst = GA + (ts[0]*4+mt)*4
        stages = [glu(t, mt, dst + 2*i, HT + ((2*un+i) % 4) * 8) for i, t in enumerate(ts)]
        for s_ in range(6):
            for sg in stages:
                for x in sg[s_]: P.e(x)
            if s_ in (0, 2, 4) and kvg: emit_list(kvg.pop(0))
            elif s_ == 2 and hst and un % 2 == 0: P.e(hst.pop(0), tag='Hst')
        vh = VH0 if mt < 2 else VH1
        if p < 3: hst.append(f"buffer_store_dwordx4 v[{dst}:{dst+3}], v{vh}, {R(WS)}, s{83+p} offen offset:{(mt&1)*1024} sc1")
        else: hst.append(f"buffer_store_dwordx2 v[{dst}:{dst+1}], v{vh}, {R(WS)}, s87 offen offset:{(mt&1)*1024} sc1")
    stamp("glu")
    P.e(f"s_mov_b32 s54, {QSCALE:#x}\ns_mov_b32 s55, {QSCALE:#x}")
    for qt in range(2):
        for t in range(8):
            e = HT + ((qt*8+t) % 4) * 8
            d = QF + (qt*8+t)*4
            if hst and (qt*8+t) % 3 != 2: P.e(hst.pop(0), tag='Hst')
            for i in range(2):
                src = QA + (t*4 + 2*qt + i)*4
                for k in range(4): P.e(f"v_accvgpr_read_b32 v{e+4*i+k}, a{src+k}")
            for k in range(4): P.e(f"v_pk_mul_f32 v[{e+2*k}:{e+2*k+1}], v[{e+2*k}:{e+2*k+1}], s[54:55]")
            for k in range(4): P.e(f"v_cvt_pk_bf16_f32 v{d+k}, v{e+2*k}, v{e+2*k+1}")
            if t > 0 or qt > 0:
                pd = d - 4
                P.e(f"v_permlane16_swap_b32 v{pd}, v{pd+2}\nv_permlane16_swap_b32 v{pd+1}, v{pd+3}")
    assert not kvg and not hst, (len(kvg), len(hst))
    pd = QF + 15*4
    P.e(f"v_permlane16_swap_b32 v{pd}, v{pd+2}\nv_permlane16_swap_b32 v{pd+1}, v{pd+3}")
    stamp("qconv")
    P.e("L_att_entry:")
    P.e(f"v_and_b32 v24, 31, v{VLN}\nv_lshrrev_b32 v25, 5, v{VLN}\nv_bfe_u32 v26, v{VLN}, 2, 2")
    P.e(f"v_xor_b32 v27, v26, v25\nv_lshlrev_b32 v24, 6, v24\nv_lshl_add_u32 v{AK0}, v27, 4, v24\nv_xor_b32 v{AK1}, 32, v{AK0}")
    P.e("s_barrier", needs=[('Z', 0), ('Z', 1)])
    ringpos = [0]
    def kread(sub, t, tag):
        r = KVR + (ringpos[0] % 8)*4; ringpos[0] += 1
        return r, [(f"ds_read_b128 a[{r}:{r+3}], v{AK0 if t % 2 == 0 else AK1} offset:{(t//2)*4096 + sub*2048}", dict(tag=tag))]
    def vread(sub, ks, dt, tag):
        r = KVR + (ringpos[0] % 8)*4; ringpos[0] += 1
        off = dt*4096 + sub*2048 + ks*1024
        return r, [(f"ds_read_b64_tr_b16 a[{r}:{r+1}], v{AV} offset:{off}", dict(tag=tag)),
                   (f"ds_read_b64_tr_b16 a[{r+2}:{r+3}], v{AV} offset:{off+512}", dict(tag=tag))]
    def S(buf, qt): return SB + (buf*2+qt)*16
    def PR(buf, qt): return PB + (buf*2+qt)*8
    def seg_qk(sub, tag, czero=False):
        frs = []
        for t in range(8):
            r, rd = kread(sub, t, tag)
            ms = []
            for qt in range(2):
                s = S(sub, qt); q = QF + (qt*8+t)*4
                c = f"v[{s}:{s+15}]" if t > 0 else ("0" if czero else f"v[{NM+qt*16}:{NM+qt*16+15}]")
                ms.append(f"v_mfma_f32_32x32x16_bf16 v[{s}:{s+15}], a[{r}:{r+3}], v[{q}:{q+3}], {c}")
            frs.append((rd, ms))
        return frs
    def seg_pv(sub, tag):
        frs = []
        for ks in range(2):
            for dt in range(4):
                r, rd = vread(sub, ks, dt, tag)
                ms = []
                for qt in range(2):
                    o = QA + (qt*4+dt)*16; p = PR(sub, qt) + ks*4
                    ms.append(f"v_mfma_f32_32x32x16_bf16 a[{o}:{o+15}], a[{r}:{r+3}], v[{p}:{p+3}], a[{o}:{o+15}]")
                frs.append((rd, ms))
        return frs
    elems = [(qt, i) for i in range(16) for qt in range(2)]
    def smE(buf, n): qt, i = elems[n]; return [f"v_exp_f32 v{S(buf,qt)+i}, v{S(buf,qt)+i}"]
    def smM(buf, n): qt, i = elems[n]; return [f"v_add_f32 v{S(buf,qt)+i}, v{S(buf,qt)+i}, v{NM+qt*16}"]
    def smAC(buf, n):
        qt, i = elems[n]
        o = [f"v_add_f32 v{LN0+qt*2+(i&1)}, v{LN0+qt*2+(i&1)}, v{S(buf,qt)+i}"]
        if i % 2 == 1: o.append(f"v_cvt_pk_bf16_f32 v{PR(buf,qt)+i//2}, v{S(buf,qt)+i-1}, v{S(buf,qt)+i}")
        return o
    def sm_wrap(G, buf):
        for g in range(4):
            if g < 2: G.put(g, smE(buf, 30+g))
            G.put(g, smAC(buf, 28+g))
    def sm_steady(G, buf, g0):
        for n in range(32):
            if g0 + n < G.n: G.put(g0 + n, smE(buf, n))
            if g0 + n + 2 < G.n: G.put(g0 + n + 2, smAC(buf, n))
    def sm_dense(G, buf, g0, g1, nE, nA, sub_m=False):
        L = nE + 3
        for k in range(L):
            g = g0 + k * (g1 - g0) // L
            if sub_m and k < 32: G.put(g, smM(buf, k))
            if sub_m and k == L - 1:
                for kk in range(L, 32): G.put(g, smM(buf, kk))
            if 1 <= k <= nE: G.put(g, smE(buf, k-1))
            if k >= 3 and k-3 < nA: G.put(g, smAC(buf, k-3))
    ALEAD = 4
    def build(segs, nxt):
        frs = [f for s in segs for f in s]
        allr = frs + nxt
        G = Gaps([m for rd, ms in frs for m in ms], True)
        for n in range(len(frs)):
            if n + ALEAD < len(allr):
                r = allr[n+ALEAD][0]
                G.put(2*n, r[0])
                if len(r) > 1: G.put(2*n+1, r[1])
            G.resv[2*n+1] = 1
        return G
    qk0 = seg_qk(0, ('Z', 0), czero=True); qk1 = seg_qk(1, ('Z', 0)); pvf = seg_pv(0, ('Z', 1))
    for n in range(ALEAD): emit_list(qk0[n][0])
    P.e(f"v_mov_b32 v{PB}, 0\nv_mov_b32 v{PB+1}, 0\nv_mov_b32 v{PB+2}, 0\nv_mov_b32 v{PB+3}, 0")
    P.e("v_lshl_add_u32 v26, v25, 2, v26\nv_lshlrev_b32 v26, 6, v26")
    for i in range(8): P.e(f"v_mfma_f32_32x32x16_bf16 a[{16*i}:{16*i+15}], v[{PB}:{PB+3}], v[{PB}:{PB+3}], 0")
    G = build([qk0], qk1)
    VP8, VP4 = TMP+6, TMP+7
    misc = [f"v_bfe_u32 v27, v{VLN}, 4, 1", "v_lshl_add_u32 v26, v27, 5, v26", f"v_and_b32 v27, 3, v{VLN}", "v_lshl_add_u32 v26, v27, 3, v26",
            f"v_add_u32 v{AV}, {z_base(1)}, v26", f"v_lshlrev_b32 v{VP4}, 2, v27", f"v_and_b32 v27, 7, v{VLN}", f"v_lshlrev_b32 v{VP8}, 2, v27"]
    misc += [f"v_mov_b32 v{LN0+i}, 0" for i in range(4)]
    misc += [f"s_lshl_b32 s54, s{sR}, 2", f"s_add_u32 s54, s54, s{sQ}", "s_lshl_b32 s54, s54, 7", f"s_add_u32 s85, s54, {FL_H:#x}", f"s_add_u32 s89, s54, {FL_O:#x}",
             f"s_lshl_b32 s55, s{sTC}, 2", "s_add_u32 s83, s85, s55", "s_add_u32 s84, s89, s55"]
    misc += [f"v_lshrrev_b32 v0, 1, v{VLN}", "v_lshlrev_b32 v0, 11, v0", f"v_and_b32 v27, 1, v{VLN}", "v_lshl_add_u32 v0, v27, 7, v0"]
    G.spread([x for z in (4, 5) for x in kvdma(z)], 0, 15)
    left = G.stream(misc, 0, 16); emit_later = left
    G.emit(P)
    emit_list(emit_later)
    VXS = 4
    for sl in range(4):
        P.e(f"s_add_u32 s54, s{sQ}, {sl}\ns_and_b32 s55, s54, 1\ns_bfe_u32 s54, s54, 0x10001\ns_lshl_b32 s54, s54, 12\ns_lshl_b32 s55, s55, 10\ns_add_u32 s54, s54, s55")
        P.e(f"v_add_u32 v{VXS+sl}, s54, v{VH0}")
    P.e(f"s_and_b32 s54, s{sR}, 3\ns_lshl_b32 s55, s{sW}, 2\ns_add_u32 s54, s54, s55\ns_lshl_b32 s54, s54, 15\ns_lshl_b32 s55, s{sTC}, 8\ns_add_u32 s54, s54, s55")
    P.e(f"v_add_u32 v0, s54, v0\nv_mov_b32 v27, {OOB:#x}\nv_cmp_gt_u32 vcc, 32, v{VLN}\ns_mov_b32 s59, s52\ns_mov_b32 s57, s53\nv_cndmask_b32 v0, v27, v0, vcc")
    P.e(f"s_lshl_b32 s87, s{sR}, 3\ns_add_u32 s87, s87, s{sTC}\ns_mul_i32 s80, s{sQ}, {14*0x40000:#x}\ns_add_u32 s80, s80, {H_OFF:#x}")
    P.e(f"s_mov_b32 s86, {z_base(8)}\ns_mov_b32 s93, {(-131072) & 0xffffffff:#x}\ns_mov_b32 s94, 0x8000\ns_mov_b32 s58, s52")
    stamp("a_qk0")
    P.e("s_cmp_lg_u32 s95, 0\ns_cbranch_scc1 L_havemax")
    for qt in range(2): P.e(f"v_max3_f32 v{MX+qt}, v{S(0,qt)}, v{S(0,qt)+1}, v{S(0,qt)+2}")
    for i in range(3, 15, 2):
        for qt in range(2): P.e(f"v_max3_f32 v{MX+qt}, v{MX+qt}, v{S(0,qt)+i}, v{S(0,qt)+i+1}")
    for qt in range(2): P.e(f"v_max_f32 v{MX+qt}, v{MX+qt}, v{S(0,qt)+15}")
    for qt in range(2): P.e(f"v_mov_b32 v{TMP+qt}, v{MX+qt}")
    for qt in range(2): P.e(f"v_permlane32_swap_b32 v{MX+qt}, v{TMP+qt}")
    for qt in range(2): P.e(f"v_max_f32 v{MX+qt}, v{MX+qt}, v{TMP+qt}")
    P.e("L_havemax:")
    for qt in range(2):
        for i in range(16): P.e(f"v_sub_f32 v{NM+qt*16+i}, 0, v{MX+qt}")
    stamp("a_max")
    G = build([qk1], pvf)
    sm_dense(G, 0, 0, 16, 30, 28, sub_m=True)
    G.put(2*(8-ALEAD)-1, ("s_barrier", dict(needs=[('Z', 2)])))
    G.put(10, f"v_add_u32 v{AK0}, 0x8000, v{AK0}"); G.put(12, f"v_add_u32 v{AK1}, 0x8000, v{AK1}")
    G.spread([x for z in (6, 7) for x in kvdma(z)], 0, 15)
    G.emit(P)
    def p2dma(z, dyn=False, tag=None, slot=None, lo=0):
        s = z - 16
        kw = dict(tag=tag or ('Z', z), slot=slot or z_rng(z))
        g = [("s_add_u32 s88, s86, s92", {})] if dyn else []
        for b in range(4):
            m0 = f"s_add_u32 m0, s88, {lo + b*1024}" if dyn else f"s_add_u32 m0, s92, {z_base(z) + b*1024}"
            g += [(m0, {}), (f"buffer_load_dwordx4 v{VD+b}, {R(WD if s < 14 else WO)}, s58 offen lds", kw)]
        g.append(("s_mov_b32 s58, s53", {}) if s == 13 else ("s_add_u32 s58, s58, 0x20000", {}))
        return g
    def att_iter(i0, kv):
        ringpos[0] = 16
        I = lambda k: i0 + k
        tV = lambda k: ('Z', 2*I(k)-1); tK = lambda k: ('Z', 2*I(k))
        segs = [seg_pv(0, tV), seg_qk(0, tK), seg_pv(1, tV), seg_qk(1, tK)]
        G = build(segs, seg_pv(0, lambda k: ('Z', 2*I(k)+1)))
        sm_wrap(G, 0); sm_steady(G, 1, 2); sm_steady(G, 0, 34)
        bg = 2*(32-ALEAD)-1
        G.put(bg, ("s_barrier", dict(needs=lambda k: [('Z', 2*I(k)+1), 'Hst'] + ([('Z', 2*I(k)+2)] if I(k) < 7 else []))))
        G.put(42, [f"s_cmp_eq_u32 s56, {1 if kv else 3}", "s_cselect_b32 s55, s93, s94"])
        G.put(50, f"v_add_u32 v{AV}, {'s94' if kv else 's55'}, v{AV}")
        G.put(58, f"v_add_u32 v{AK0}, {'s55' if kv else 's94'}, v{AK0}"); G.put(60, f"v_add_u32 v{AK1}, {'s55' if kv else 's94'}, v{AK1}")
        fn = kvdma if kv else p2dma
        zs = [lambda k: 2*I(k)+6, lambda k: 2*I(k)+7]
        d0 = fn(8 if kv else 16, True, lambda k: ('Z', zs[0](k)), lambda k: z_rng(zs[0](k)))
        d1 = fn(9 if kv else 17, True, lambda k: ('Z', zs[1](k)), lambda k: z_rng(zs[1](k)), 16384)[1:]
        G.put(46, [("s_add_u32 s86, s86, 0x8000", {}), (f"s_cmp_eq_u32 s86, {LDS_BYTES}", {})]); G.salu[46].append(("s_cselect_b32 s86, 0, s86", {}))
        if kv:
            G.put(bg+2, f"buffer_store_dword v{VNON}, v{VF}, {R(WS)}, s83 offen sc1")
            pf = [(f"buffer_load_dword v{VPOLL}, v0, {R(WD)}, s59 offen", {}), ("s_add_u32 s59, s59, 0x80000", {}),
                  (f"buffer_load_dword v{TMP}, v0, {R(WO)}, s57 offen", {}), ("s_add_u32 s57, s57, 0x80000", {})]
        else:
            G.put(bg+2, f"buffer_load_dword v{VPOLL}, v{VP8}, {R(WS)}, s85 offen sc1")
            pf = [(f"buffer_load_dword v{TMP}, v{TMP+1}, s[4:7], s59 offen", {}), (f"s_mov_b32 s59, {OOB:#x}", {})]
        G.spread(d0 + d1 + pf, 0, 44 if kv else 41)
        G.put(62, ["s_sub_u32 s56, s56, 1", "s_cmp_lg_u32 s56, 0"])
        return G
    for nm, i0, cnt, kv in (("A", 1, 4, True), ("B", 5, 3, False)):
        if nm == "B":
            P.e(f"v_lshlrev_b32 v{TMP+1}, 7, v{VLN}\ns_lshl_b32 s59, s{sW}, 13\ns_add_u32 s59, s59, L_p2mid-L_pc\ns_cmp_eq_u32 s{sTC}, 0\ns_cselect_b32 s59, s59, {OOB:#x}")
        stamp("a_pre" + nm)
        P.e(f"s_mov_b32 s56, {cnt}\nL_att{nm}:")
        P.loop_begin(cnt)
        att_iter(i0, kv).emit(P)
        P.e(f"s_cbranch_scc1 L_att{nm}")
        P.loop_end()
    stamp("a_B")
    XS2 = [48, 144, 80, 112]
    def xset(s): return 208 if s == 29 else XS2[s % 4]
    def x2load(s):
        b = xset(s)
        ops = []
        for kp in range(2):
            for sl in range(4):
                r = b + (kp*4 + sl)*4
                ops.append((f"buffer_load_dwordx4 v[{r}:{r+3}], v{VXS+sl}, {R(WS)}, s80 offen offset:{kp*2048}", {}))
        if s == 13: ops += [(f"s_lshl_b32 s80, s{sQ}, 22", {}), (f"s_add_u32 s80, s80, {O_OFF:#x}", {})]
        else: ops.append(("s_add_u32 s80, s80, 0x40000", {}))
        return ops
    spin = []
    def pollchk(name, voff, soff):
        spin.append(f"L_spin_{name}:\nbuffer_load_dword v{VPOLL},v{voff},{R(WS)},{soff} offen sc1\ns_waitcnt vmcnt(0)\nv_cmp_ne_u32 vcc,s{sN},v{VPOLL}\n"
                    f"s_add_u32 s100,s100,1\ns_cmp_gt_u32 s100,{SPIN_MAX}\ns_cbranch_scc1 L_ok_{name}\ns_nop 4\n"
                    f"s_cbranch_vccnz L_spin_{name}\ns_branch L_ok_{name}")
        return [(f"v_cmp_ne_u32 vcc, s{sN}, v{VPOLL}", {}), (f"s_cbranch_vccnz L_spin_{name}", {}), (f"L_ok_{name}:", {})]
    ringpos[0] = 16
    G = build([seg_pv(0, ('Z', 15)), seg_pv(1, ('Z', 15))], [])
    sm_wrap(G, 0); sm_dense(G, 1, 2, 22, 32, 32)
    chk = pollchk("h", VP8, "s85")
    G.put(0, chk[0]); G.salu[2] += chk[1:]
    G.spread(x2load(0) + x2load(1), 3, 31)
    g15 = 21
    CHK = TMP
    G.put(g15 - 3, [f"v_mov_b32 v{CHK+2}, {f32(2.0**40):#x}", f"v_mov_b32 v{CHK+3}, {z_base(14)}"])
    chkops = [f"v_add_f32 v{LN0}, v{LN0}, v{LN0+1}", f"v_add_f32 v{LN0+2}, v{LN0+2}, v{LN0+3}",
              f"v_add_f32 v{CHK+1}, v{LN0}, v{LN0+2}", f"v_mov_b32 v{LN0+1}, v{LN0}", f"v_mov_b32 v{LN0+3}, v{LN0+2}",
              f"v_cmp_nlt_f32 vcc, v{CHK+1}, v{CHK+2}",
              (f"v_permlane32_swap_b32 v{LN0}, v{LN0+1}", {}, 1), f"v_permlane32_swap_b32 v{LN0+2}, v{LN0+3}"]
    left = G.stream(chkops, g15 + 1, g15 + 4); assert not left
    G.salu[g15 + 4] += [("s_cmp_lg_u64 vcc, 0", {}), ("s_cselect_b32 s54, 1, 0", {})]
    G.put(g15 + 5, [f"v_mov_b32 v{CHK}, s54", f"v_add_f32 v{LN0}, v{LN0}, v{LN0+1}", f"v_add_f32 v{LN0+2}, v{LN0+2}, v{LN0+3}",
                    f"v_add_u32 v{CHK+1}, s91, v{CHK+3}"])
    G.put(g15 + 6, f"ds_write_b32 v{CHK+1}, v{CHK}")
    G.put(g15 + 6, [f"v_rcp_f32 v{LN0}, v{LN0}", f"v_rcp_f32 v{LN0+2}, v{LN0+2}"])
    G.salu[g15 + 7] += [("s_waitcnt lgkmcnt(0)", {}), ("s_barrier", dict(needs=[('Z', 16)]))]
    for w in range(4): G.put(g15 + 8, f"ds_read_b32 v{CHK+w if w < 3 else CHK+4}, v{CHK+3} offset:{w*1024}")
    WR2, LEAD2 = 176, 4
    def w2read(s, f):
        kp, t = f // 8, f % 8
        r = WR2 + (f % 8)*4
        tag = ('Z', 16+s)
        return [(f"ds_read_b64_tr_b16 v[{r}:{r+1}], v{AW+t} offset:{kp*8192}", dict(tag=tag)),
                (f"ds_read_b64_tr_b16 v[{r+2}:{r+3}], v{AW+t} offset:{kp*8192+4096}", dict(tag=tag))]
    for f in range(LEAD2): G.put(g15 + 9 + f // 2, w2read(0, f))
    sc = [f"s_lshl_b32 s54, s{sJ}, 19", f"s_add_u32 s54, s54, {O_OFF:#x}", "s_add_u32 s55, s54, 0x40000", "s_add_u32 s56, s54, 0x1000", "s_add_u32 s57, s55, 0x1000"]
    G.emit(P)
    P.e(f"v_or3_b32 v{CHK}, v{CHK}, v{CHK+1}, v{CHK+2}\nv_or_b32 v{CHK}, v{CHK}, v{CHK+4}")
    P.e(f"v_readfirstlane_b32 s54, v{CHK}")
    P.e("s_andn2_b32 s54, s54, s95\ns_cbranch_scc1 L_fallback")
    stamp("attn")
    BA, SA = 128, 0
    OT = 208
    emit_list(sc)
    P.e(f"s_mul_i32 s86, s87, 196608\ns_mul_i32 s82, s{sW}, 12288\ns_add_u32 s86, s86, s82")
    for sl, dst in ((1, 93), (2, 94), (3, 81)):
        P.e(f"s_add_u32 s82, s{sQ}, {sl}\ns_and_b32 s82, s82, 3\ns_mul_i32 s82, s82, 49152\ns_add_u32 s{dst}, s86, s82\ns_add_u32 s{dst}, s{dst}, {(sl-1)*4096 + EXB_OFF:#x}")
    P.e(f"s_mul_i32 s82, s{sQ}, 49152\ns_add_u32 s82, s82, s86")
    P.e(f"s_lshl_b32 s87, s87, 7\ns_lshl_b32 s83, s{sQ}, 2\ns_add_u32 s83, s83, s87\ns_mov_b32 s59, {NLOG2E:#x}")
    WB = {1: 93, 2: 94, 3: 81}
    oops = []
    n = 0
    for qt in range(2):
        for dt in range(4):
            for u in range(2):
                e = OT + (n % 4)*8; d = OT + 32 + (n % 4)*4; n += 1
                o = QA + (qt*4+dt)*16
                src = [o + 4*u + k for k in range(4)] + [o + 4*u + 8 + k for k in range(4)]
                oops += [f"v_accvgpr_read_b32 v{e+k}, a{src[k]}" for k in range(8)]
                oops += [f"v_mul_f32 v{e+k}, v{e+k}, v{LN0+qt*2}" for k in range(8)]
                oops += [f"v_cvt_pk_bf16_f32 v{d+k}, v{e+2*k}, v{e+2*k+1}" for k in range(4)]
                oops.append((f"buffer_store_dwordx4 v[{d}:{d+3}], v{VO}, {R(WS)}, s{54 + (dt >> 1) + 2*qt} offen offset:{u*512 + (dt&1)*2048} sc1", dict(tag='Ost')))
    pcount = [0]
    def piece(accb, sl, i, tag, tmp, pk):
        n = pcount[0]; pcount[0] += 1
        e = tmp + (n % 2)*8; d = pk + (n % 2)*4
        src = accb + sl*32 + i*8
        ops = [f"v_accvgpr_read_b32 v{e+k}, a{src+k}" for k in range(8)]
        ops += [f"v_cvt_pk_bf16_f32 v{d+k}, v{e+2*k}, v{e+2*k+1}" for k in range(4)]
        ops.append((f"buffer_store_dwordx4 v[{d}:{d+3}], v{VL16}, {R(WS)}, s{WB[sl]} offen offset:{i*1024} sc1", dict(tag=tag)))
        return ops
    def limit(ops, nst):
        c = 0
        for i, x in enumerate(ops):
            if isinstance(x, tuple) and x[0].startswith('buffer_store'):
                c += 1
                if c > nst: return ops[:i], ops[i:]
        return ops, []
    pend = list(oops)
    state = {}
    WLEAD = 6
    SO, SBP = opt.get('so', 10), opt.get('sbp', 24)
    prev_vm = -3
    tx = lambda x: x[0] if isinstance(x, tuple) else x
    def mfma2(accb, s, kp, t, wr, kw0):
        out = []
        for sl in range(4):
            a = accb + (sl*8+t)*4
            xr = xset(s) + (kp*4+sl)*4
            c = "0" if (s in (0, 14) and kp == 0) else f"a[{a}:{a+3}]"
            out.append((f"v_mfma_f32_16x16x32_bf16 a[{a}:{a+3}], v[{wr}:{wr+3}], v[{xr}:{xr+3}], {c}", kw0 if sl == 0 else {}))
        return out
    win = [(st, kp, t) for p in range(4) for st in range(26, 30) for kp in range(2) for t in (2*p, 2*p+1)]
    def wwread(n):
        st, kp, t = win[n]
        r = WR2 + (n % 8)*4
        off = (st-26)*16384 + kp*8192
        tag = ('Z', 16+st)
        return [(f"ds_read_b64_tr_b16 v[{r}:{r+1}], v{AW+t} offset:{off}", dict(tag=tag)),
                (f"ds_read_b64_tr_b16 v[{r+2}:{r+3}], v{AW+t} offset:{off+4096}", dict(tag=tag))]
    for s in range(26):
        accb = BA if s < 14 else SA
        mf = []
        for f in range(16):
            kw = {}
            if f == 0: kw = dict(rdx=f"v[{xset(s)}:{xset(s)+31}]")
            elif f % 2 == 1 and f < 15:
                w2 = WR2 + ((f+1) % 8)*4; kw = dict(rdx=f"v[{w2}:{w2+3}]")
            mf += mfma2(accb, s, f // 8, f % 8, WR2 + (f % 8)*4, kw)
        G = Gaps(mf, False)
        G.aa = True; G.vmgap = 2; G.prev_vm = prev_vm
        for f in range(1, 16, 2): G.resv[4*f-1] = 1
        G.resv[63] = 1
        for f in range(16):
            ff = f + LEAD2
            rd = w2read(s, ff) if ff < 16 else (w2read(s+1, ff-16) if s < 25 else wwread(ff-16))
            G.put(4*f, rd[0]); G.put(4*f+2, rd[1])
        bg = 4*(16-LEAD2) - 1
        needs = [('Z', 16+s+1)] if s < 25 else [('Z', z) for z in range(42, 46)]
        if s == state.get('oflag'): needs.append('Ost')
        if s == state.get('bflag'): needs.append('Bst')
        G.put(bg, ("s_barrier", dict(needs=needs)))
        if s == state.get('oflag'): G.put(bg+2, f"buffer_store_dword v{VNON}, v{VF}, {R(WS)}, s84 offen sc1")
        if s == state.get('bflag'):
            G.put(bg-2, f"s_add_u32 s86, s83, {FL_BP:#x}")
            G.put(bg+2, f"buffer_store_dword v{VNON}, v{VF}, {R(WS)}, s86 offen sc1")
            for k, r in enumerate((93, 94, 81)): G.put(bg+6+4*k, f"s_add_u32 s{r}, s{r}, {EXS_OFF-EXB_OFF:#x}")
        d = (z_base(16+s+1) - z_base(16+s)) & 0xffffffff
        for t in range(8): G.put(4*(8+t-LEAD2)+3 - (1 if G.resv[4*(8+t-LEAD2)+3] else 0), f"v_add_u32 v{AW+t}, {d:#x}, v{AW+t}")
        g_first = 0
        if s == SO: G.put(1, f"buffer_load_dword v{VPOLL}, v{VP8}, {R(WS)}, s89 offen sc1"); g_first = 2
        if s == SBP: G.put(1, f"buffer_load_dword v{VPOLL}, v{VP4}, {R(WS)}, s54 offen sc1"); g_first = 2
        if s == SBP - 1: G.put(41, f"s_add_u32 s54, s87, {FL_BP:#x}")
        if s == SO + 1:
            c = pollchk("o", VP8, "s89")
            G.put(1, c[0]); G.salu[5] += c[1:]; g_first = 6
        xl = x2load(s+3)
        if s == 0: xl = x2load(2) + xl[:4]
        if s == 1: xl = x2load(3)[4:] + xl
        if s == 24: xl = xl + x2load(28)[:4]
        if s == 25: xl = xl[4:] + x2load(29)
        if s == 0: state['wq'] = groups([x for z in range(22, 46) for x in p2dma(z)])
        rate = opt.get('wrate') or {0: 0, 1: 0, 2: 0, 3: 4, 4: 4, 5: 4, 6: 4}
        npc = rate.get(s, 6 if 7 <= s <= 13 else 4 if 14 <= s <= 19 else 5) if opt.get('relief') else 4
        dg = state['wq'][:npc]; state['wq'] = state['wq'][npc:]
        xg = groups(xl)
        mix = []
        while dg or xg:
            for _ in range(2 if len(xg) >= 2*len(dg) else 1):
                if xg: mix += xg.pop(0)
            if dg: mix += dg.pop(0)
        G.spread(mix, g_first, 62)
        if s == 14: pend += [x for sl in (1, 2, 3) for i in range(4) for x in piece(BA, sl, i, 'Bst', 208, 224)]
        had = bool(pend)
        if pend:
            nst = opt.get('nst', 3) if s < 14 else opt.get('nstb', 2)
            for half in range(nst):
                now, later = limit(pend, 1)
                left = G.stream(now, half * 64 // nst, (half + 1) * 64 // nst - (1 if half == nst - 1 else 0))
                pend = left + later
        if had and not pend:
            if s < 14: state['oflag'] = s + 1
            else: state['bflag'] = s + 1
        prev_vm = G.last_vm()
        G.emit(P)
        if s == 9: P.e("L_p2mid:")
        if s in (3, 8, 13, 18, 25): stamp(f"p2_{s}")
    assert not state['wq'], len(state['wq'])
    assert not pend and state['oflag'] < SO and state['bflag'] < SBP, (state['oflag'], state['bflag'])
    mf = []
    for n, (st, kp, t) in enumerate(win):
        kw = {}
        if n < 16 and n % 4 == 0: kw = dict(rdx=f"v[{xset(st)}:{xset(st)+31}]")
        elif n % 2 == 1 and n < 63:
            w2 = WR2 + ((n+1) % 8)*4; kw = dict(rdx=f"v[{w2}:{w2+3}]")
        mf += mfma2(SA, st, kp, t, WR2 + (n % 8)*4, kw)
    G = Gaps(mf, False)
    G.aa = True; G.vmgap = 4; G.prev_vm = prev_vm
    for n in range(1, 64): G.resv[4*n-1] = 1 if (n % 2 == 1 or (n < 16 and n % 4 == 0)) else 0
    for n in range(64 - LEAD2):
        rd = wwread(n + LEAD2)
        G.put(4*n, rd[0]); G.put(4*n+2, rd[1])
    c = pollchk("bp", VP4, "s54")
    G.put(1, c[0]); G.salu[5] += c[1:]
    BL = 160
    gl = [(f"s_add_u32 s86, s82, {EXB_OFF:#x}", {})]
    for k in range(12):
        if k and k % 4 == 0: gl.append(("s_add_u32 s86, s86, 0x1000", {}))
        gl.append((f"buffer_load_dwordx4 a[{BL+4*k}:{BL+4*k+3}], v{VL16}, {R(WS)}, s86 offen offset:{(k%4)*1024} sc1", {}))
    G.spread(gl, 6, 62)
    XRES, xa = 8, 24
    VF2 = 0
    pre = [f"v_mov_b32 v{VF2}, v{VF}", f"v_and_b32 v{xa}, 15, v{VLN}", f"v_lshlrev_b32 v{xa}, 11, v{xa}", f"v_lshrrev_b32 v{xa+1}, 4, v{VLN}", f"v_lshl_add_u32 v{xa+2}, v{xa+1}, 3, v{xa}",
           (f"s_lshl_b32 s54, s{sR}, 19", {}), (f"s_lshl_b32 s55, s{sW}, 17", {}), ("s_add_u32 s54, s54, s55", {}),
           (f"s_lshl_b32 s55, s{sQ}, 15", {}), ("s_add_u32 s54, s54, s55", {}), (f"s_lshl_b32 s55, s{sTC}, 8", {}), ("s_add_u32 s54, s54, s55", {}),
           f"v_and_b32 v{xa+3}, 1, v{xa+1}", f"v_lshl_add_u32 v{xa}, v{xa+3}, 5, v{xa}", f"v_lshrrev_b32 v{xa+1}, 1, v{xa+1}", f"v_lshl_add_u32 v{xa}, v{xa+1}, 4, v{xa}",
           f"v_sub_u32 v{VP4}, s{sQ}, v{VLN}", f"v_and_b32 v{VP4}, 3, v{VP4}", f"v_lshlrev_b32 v{VP4}, 2, v{VP4}"]
    left = G.stream(pre, 6, 64); assert not left
    def spiece(sl, i):
        n = pcount[0]; pcount[0] += 1
        e = 240 + (n % 2)*8; d = (4, 32)[n % 2]
        src = SA + sl*32 + i*8
        ops = [f"v_accvgpr_read_b32 v{e+k}, a{src+k}" for k in range(8)]
        ops += [f"v_cvt_pk_bf16_f32 v{d+k}, v{e+2*k}, v{e+2*k+1}" for k in range(4)]
        ops.append((f"buffer_store_dwordx4 v[{d}:{d+3}], v{VL16}, {R(WS)}, s{WB[sl]} offen offset:{i*1024} sc1", dict(tag='Sst')))
        return ops
    xr = [(f"buffer_load_dwordx2 v[{XRES+2*t}:{XRES+2*t+1}], v{xa+2}, {R(XS)}, s54 offen offset:{32*t}", {}) for t in range(8)]
    for p in range(3):
        left = G.stream([x for sl in (1, 2, 3) for x in spiece(sl, p)], 64*(p+1) + 3, 64*(p+2) - 1); assert not left
        left = G.stream(xr[3*p:3*p+3], 64*(p+1), 64*(p+2) - 1); assert not left
    G.emit(P)
    P.info = dict(oflag=state['oflag'], bflag=state['bflag'])
    stamp("p2_S")
    emit_list([x for sl in (1, 2, 3) for x in spiece(sl, 3)])
    P.e(f"s_add_u32 s86, s83, {FL_SP:#x}\ns_add_u32 s55, s87, {FL_SP:#x}")
    stamp("s_issued")
    GV, SV, XF, LZ, TT = 48, 80, 112, 144, 192
    for k in range(32): P.e(f"v_accvgpr_read_b32 v{GV+k}, a{BA+k}")
    for k in range(24): P.e(f"v_accvgpr_read_b32 v{LZ+k}, a{BL+k}")
    P.e("s_barrier", needs=['Sst'])
    P.e(f"buffer_store_dword v{VNON}, v{VF2}, {R(WS)}, s86 offen sc1")
    stamp("s_pub")
    for k in range(24, 48): P.e(f"v_accvgpr_read_b32 v{LZ+k}, a{BL+k}")
    def addpart(dst, l):
        for k in range(16):
            t = TT + (k % 4)*2
            P.e(f"v_lshlrev_b32 v{t}, 16, v{l+k}\nv_and_b32 v{t+1}, s90, v{l+k}\nv_pk_add_f32 v[{dst+2*k}:{dst+2*k+1}], v[{dst+2*k}:{dst+2*k+1}], v[{t}:{t+1}]")
    for j in range(3): addpart(GV, LZ + 16*j)
    P.e(f"s_mov_b32 s56, 14\ns_mov_b32 s57, 0\ns_mov_b32 s91, 0\ns_mov_b32 s88, 1\ns_add_u32 s82, s82, {EXS_OFF:#x}")
    def take(tagn):
        P.e(f"v_cmp_eq_u32 vcc, s{sN}, v{VPOLL}")
        P.e("s_and_b32 s57, vcc_lo, s56\ns_andn2_b32 s56, s56, s57")
        for sl in (1, 2, 3):
            P.e(f"s_bitcmp1_b32 s57, {sl}\ns_cbranch_scc0 L_nl{tagn}_{sl}\ns_add_u32 s86, s82, {(sl-1)*4096}")
            for i in range(4):
                l = LZ + (sl-1)*16 + 4*i
                P.e(f"buffer_load_dwordx4 v[{l}:{l+3}], v{VL16}, {R(WS)}, s86 offen offset:{i*1024} sc1")
            P.e(f"L_nl{tagn}_{sl}:")
    P.e(f"buffer_load_dword v{VPOLL}, v{VP4}, {R(WS)}, s55 offen sc1")
    for k in range(32): P.e(f"v_accvgpr_read_b32 v{SV+k}, a{SA+k}")
    for k in range(16): P.e(f"v_lshlrev_b32 v{XF+2*k}, 16, v{XRES+k}\nv_and_b32 v{XF+2*k+1}, s90, v{XRES+k}")
    P.e("s_waitcnt vmcnt(0)")
    take("a")
    P.e("s_mov_b32 s58, s59\ns_mov_b32 s92, 1.0\ns_mov_b32 s93, 1.0")
    for k0 in range(0, 32, 8):
        t = TT
        for k in range(0, 8, 2): P.e(f"v_pk_mul_f32 v[{t+k}:{t+k+1}], v[{GV+k0+k}:{GV+k0+k+1}], s[58:59]")
        for k in range(8): P.e(f"v_exp_f32 v{t+k}, v{t+k}")
        for k in range(0, 8, 2): P.e(f"v_pk_add_f32 v[{t+k}:{t+k+1}], v[{t+k}:{t+k+1}], s[92:93]")
        for k in range(8): P.e(f"v_rcp_f32 v{t+k}, v{t+k}")
        for k in range(0, 8, 2): P.e(f"v_pk_mul_f32 v[{GV+k0+k}:{GV+k0+k+1}], v[{GV+k0+k}:{GV+k0+k+1}], v[{t+k}:{t+k+1}]")
    stamp("g_done")
    P.e("L_fin_loop:")
    P.e("s_cmp_eq_u32 s56, 0\ns_cbranch_scc1 L_fin_nopoll")
    P.e(f"buffer_load_dword v{VPOLL}, v{VP4}, {R(WS)}, s55 offen sc1")
    P.e("L_fin_nopoll:")
    P.e("s_waitcnt vmcnt(0)\ns_or_b32 s91, s91, s57")
    for sl in (1, 2, 3):
        P.e(f"s_lshl_b32 s86, s88, 1\ns_and_b32 s86, s86, s91\ns_andn2_b32 s86, s86, s88\ns_bitcmp1_b32 s86, {sl}\ns_cbranch_scc0 L_na_{sl}")
        addpart(SV, LZ + (sl-1)*16)
        P.e(f"s_bitset1_b32 s88, {sl}\nL_na_{sl}:")
    take("b")
    P.e(f"s_add_u32 s100, s100, 1\ns_cmp_gt_u32 s100, {SPIN_MAX}\ns_cbranch_scc1 L_fin_done")
    P.e("s_cmp_lg_u32 s88, 15\ns_cbranch_scc1 L_fin_loop")
    P.e("L_fin_done:")
    stamp("s_flag")
    for p in range(4):
        for k in range(4*p, 4*p+4):
            P.e(f"v_pk_fma_f32 v[{SV+2*k}:{SV+2*k+1}], v[{SV+2*k}:{SV+2*k+1}], v[{GV+2*k}:{GV+2*k+1}], v[{XF+2*k}:{XF+2*k+1}]")
        for k in range(4*p, 4*p+4): P.e(f"v_cvt_pk_bf16_f32 v{TT+k}, v{SV+2*k}, v{SV+2*k+1}")
        q = TT + 4*p
        P.e(f"v_permlane16_swap_b32 v{q}, v{q+2}\nv_permlane16_swap_b32 v{q+1}, v{q+3}")
        P.e(f"buffer_store_dwordx4 v[{q}:{q+3}], v{xa}, {R(OUT)}, s54 offen offset:{64*p}" + {0: "", 1: " sc1", 2: " nt", 3: " sc0 sc1"}[opt.get('outf', 1)])
    if stamps:
        P.e("s_waitcnt vmcnt(0)")
        stamp("end")
        P.e(f"s_memrealtime s[98:99]\ns_waitcnt lgkmcnt(0)\nv_writelane_b32 v{VST}, s96, 30\nv_writelane_b32 v{VST}, s98, 31\nv_writelane_b32 v{VST}, s100, 29")
        P.e(f"s_lshl_b32 s58, s2, 2\ns_add_u32 s58, s58, s{sW}\ns_lshl_b32 s58, s58, 8\ns_add_u32 s58, s58, {TS_OFF:#x}\nv_lshlrev_b32 v24, 2, v{VLN}")
        P.e(f"buffer_store_dword v{VST}, v24, {R(WS)}, s58 offen")
    P.e("L_end:")
    P.e("s_endpgm")
    P.solve_waits()
    errs = P.check_dma()
    assert not errs, "\n".join(errs[:10])
    P.solve_hazards()
    Fb = Prog()
    Fb.e("L_fallback:")
    Fb.e("s_waitcnt vmcnt(0) lgkmcnt(0)\ns_barrier")
    Fb.e(f"v_and_b32 v24, 31, v{VLN}\nv_lshrrev_b32 v25, 5, v{VLN}\nv_bfe_u32 v26, v{VLN}, 2, 2")
    Fb.e(f"v_xor_b32 v27, v26, v25\nv_lshlrev_b32 v24, 6, v24\nv_lshl_add_u32 v{AK0}, v27, 4, v24\nv_xor_b32 v{AK1}, 32, v{AK0}")
    Fb.e(f"v_mov_b32 v{MX}, 0xff800000\nv_mov_b32 v{MX+1}, 0xff800000\ns_mov_b32 s51, s50\ns_mov_b32 s55, 8")
    Fb.e("L_fb_loop:")
    for cb in range(4):
        Fb.e(f"s_add_u32 m0, s91, {cb*4096 - 64*cb}\nbuffer_load_dwordx4 v{VDK}, {R(KS)}, s51 offen offset:{64*cb} lds")
    Fb.e("s_add_u32 s51, s51, 0x4000\ns_waitcnt vmcnt(0)\ns_barrier")
    for sub in range(2):
        for t in range(8):
            r = KVR + t*4
            Fb.e(f"ds_read_b128 a[{r}:{r+3}], v{AK0 if t % 2 == 0 else AK1} offset:{(t//2)*4096 + sub*2048}")
        for t in range(8):
            r = KVR + t*4
            for qt in range(2):
                s = S(sub, qt); q = QF + (qt*8+t)*4
                Fb.e(f"v_mfma_f32_32x32x16_bf16 v[{s}:{s+15}], a[{r}:{r+3}], v[{q}:{q+3}], " + (f"v[{s}:{s+15}]" if t else "0"))
        Fb.e("s_nop 7")
    for sub in range(2):
        for qt in range(2):
            s = S(sub, qt)
            for i in range(0, 16, 2): Fb.e(f"v_max3_f32 v{MX+qt}, v{MX+qt}, v{s+i}, v{s+i+1}")
    Fb.e("s_barrier\ns_sub_u32 s55, s55, 1\ns_cmp_lg_u32 s55, 0\ns_cbranch_scc1 L_fb_loop")
    for qt in range(2): Fb.e(f"v_mov_b32 v{TMP+qt}, v{MX+qt}")
    for qt in range(2): Fb.e(f"v_permlane32_swap_b32 v{MX+qt}, v{TMP+qt}")
    for qt in range(2): Fb.e(f"v_max_f32 v{MX+qt}, v{MX+qt}, v{TMP+qt}")
    Fb.e("s_mov_b32 s51, s50")
    for z in range(4):
        for x in kvdma(z): Fb.e(x[0])
    Fb.e("s_mov_b32 s95, 1\ns_waitcnt vmcnt(0)\ns_branch L_att_entry")
    Fb.solve_waits(); Fb.solve_hazards()
    text = P.text() + "\n" + "\n".join(spin) + "\n" + Fb.text() + "\nL_code_end:"
    return text, kd(name, 512, 256, 102), P
```

```python
import re

REG_RE = re.compile(r'^(-|\|)?(v|a|s)(\d+)\|?$')
RNG_RE = re.compile(r'^(-|\|)?(v|a|s)\[(\d+):(\d+)\]\|?$')

def regs_of(tok):
    tok = tok.strip()
    if tok.startswith('abs(') or tok.startswith('neg('):
        tok = tok[4:-1]
    m = REG_RE.match(tok)
    if m: return [(m.group(2), int(m.group(3)))]
    m = RNG_RE.match(tok)
    if m: return [(m.group(2), i) for i in range(int(m.group(3)), int(m.group(4)) + 1)]
    if tok in ('vcc', 'vcc_lo', 'vcc_hi'): return [('s', 'vcc')]
    if tok == 'exec': return [('s', 'exec')]
    if tok == 'm0': return [('s', 'm0')]
    return []

def split_ops(s):
    out, depth, cur = [], 0, ''
    for ch in s:
        if ch in '[(': depth += 1
        if ch in '])': depth -= 1
        if ch == ',' and depth == 0:
            out.append(cur.strip()); cur = ''
        else:
            cur += ch
    if cur.strip(): out.append(cur.strip())
    return out

TRANS = ('v_exp_f32', 'v_log_f32', 'v_rcp_f32', 'v_rsq_f32', 'v_sqrt_f32', 'v_sin_f32', 'v_cos_f32')

class Inst:
    __slots__ = ('text', 'mn', 'rd', 'wr', 'cls', 'tag', 'needs', 'wait', 'pad', 'rdA', 'rdC', 'note', 'slot', 'dummy')
    def __init__(self, text, tag=None, needs=None, slot=None, rdx=None, dummy=False):
        self.text = text
        self.tag = tag
        self.needs = needs
        self.slot = slot
        self.dummy = dummy
        self.wait = {}
        self.pad = 0
        t = text.split(';')[0].strip()
        parts = t.split(None, 1)
        self.mn = mn = parts[0]
        rest = parts[1] if len(parts) > 1 else ''
        ops = split_ops(rest)
        mods = ''
        if ops:
            last = ops[-1].split()
            if len(last) > 1:
                ops[-1] = last[0]; mods = ' '.join(last[1:])
        R = lambda i: regs_of(ops[i]) if i < len(ops) else []
        allr = lambda a: [r for i in range(a, len(ops)) for r in regs_of(ops[i])]
        rd, wr = [], []
        self.rdA = []; self.rdC = []
        cls = 'other'
        if mn.startswith('v_mfma'):
            cls = 'mfma'; wr = R(0); self.rdA = R(1) + R(2); self.rdC = R(3); rd = self.rdA + self.rdC
        elif mn.startswith('ds_read') or mn.startswith('ds_bpermute') or mn.startswith('ds_swizzle'):
            cls = 'lds'; wr = R(0); rd = allr(1)
        elif mn.startswith('ds_write') or mn.startswith('ds_or') or mn.startswith('ds_add'):
            cls = 'lds'; rd = allr(0)
        elif mn.startswith('buffer_load') or mn.startswith('global_load'):
            cls = 'vmem'
            if re.search(r'\blds\b', mods): rd = allr(0) + [('s', 'm0')]; cls = 'dma'
            else: wr = R(0); rd = allr(1)
        elif mn.startswith('buffer_store') or mn.startswith('global_store'):
            cls = 'store'; rd = allr(0)
        elif mn.startswith('buffer_atomic') or mn.startswith('global_atomic'):
            cls = 'vmem'; rd = allr(0)
            if re.search(r'\bsc0\b', mods): wr = R(0)
        elif mn.startswith('buffer_wbl2') or mn.startswith('buffer_inv'):
            cls = 'store'
        elif mn.startswith('s_load') or mn.startswith('s_memtime') or mn.startswith('s_memrealtime'):
            cls = 'smem'; wr = R(0); rd = allr(1)
        elif mn.startswith('v_permlane') and 'swap' in mn:
            cls = 'valu'; rd = R(0) + R(1); wr = R(0) + R(1)
        elif mn.startswith('v_cmp'):
            cls = 'valu'; wr = R(0); rd = allr(1)
        elif mn in ('v_fmac_f32', 'v_pk_fmac_f16', 'v_dot2c_f32_bf16'):
            cls = 'valu'; wr = R(0); rd = allr(0)
        elif mn.startswith('v_cndmask'):
            cls = 'valu'; wr = R(0); rd = allr(1)
        elif mn.startswith('v_add_co') or mn.startswith('v_sub_co') or mn.startswith('v_addc_co'):
            cls = 'valu'; wr = R(0) + R(1); rd = allr(2)
        elif mn.startswith('v_writelane'):
            cls = 'valu'; wr = R(0); rd = allr(0)
        elif mn.startswith('v_'):
            cls = 'valu'; wr = R(0); rd = allr(1)
        elif mn.startswith('s_cmp') or mn.startswith('s_bitcmp'):
            cls = 'salu'; rd = allr(0)
        elif mn in ('s_waitcnt', 's_barrier', 's_nop', 's_branch', 's_endpgm', 's_setprio', 's_sleep') or mn.startswith('s_cbranch'):
            cls = 'ctl'
        elif mn.startswith('s_and_saveexec') or mn.startswith('s_or_saveexec'):
            cls = 'salu'; wr = R(0) + [('s', 'exec')]; rd = allr(1) + [('s', 'exec')]
        elif mn.startswith('s_'):
            cls = 'salu'; wr = R(0); rd = allr(1)
            if mn in ('s_addk_i32', 's_mulk_i32'): rd += R(0)
        elif mn.endswith(':') or mn.startswith('.'):
            cls = 'label'
        self.cls = cls
        self.rd = set(rd); self.wr = set(wr)
        if rdx: self.rd |= set(regs_of(rdx))
    def passes(self):
        return 8 if '32x32x16' in self.mn else 4
    def states(self):
        if self.cls == 'label': return 0
        if self.mn == 's_nop': return int(self.text.split()[1]) + 1
        return 1

class Loop:
    def __init__(self, count, body): self.count = count; self.body = body

class Prog:
    def __init__(self):
        self.items = []
        self.stack = [self.items]
    def e(self, text, **kw):
        for line in text.split('\n'):
            line = line.strip()
            if not line: continue
            i = Inst(line, **kw)
            self.stack[-1].append(i)
        return i
    def add(self, inst): self.stack[-1].append(inst)
    def loop_begin(self, count):
        l = Loop(count, [])
        self.stack[-1].append(l); self.stack.append(l.body)
    def loop_end(self): self.stack.pop()
    def trace(self, items=None, maxrep=None):
        for it in (self.items if items is None else items):
            if isinstance(it, Loop):
                n = it.count if maxrep is None else min(it.count, maxrep)
                for k in range(n):
                    for x in self.trace(it.body, maxrep): yield (x[0], (k,) + x[1])
            else:
                yield (it, ())
    def flat(self, items=None):
        for it in (self.items if items is None else items):
            if isinstance(it, Loop):
                yield from self.flat(it.body)
            else: yield it

    def solve_waits(self, tagfn=None):
        def res(t, it):
            return t(*it) if callable(t) else t
        for rnd in range(6):
            changed = False
            vm, lg = [], []
            smem_out = False
            for inst, it in self.trace():
                need_vm, need_lg = None, None
                touched = inst.rd | inst.wr
                if inst.mn == 's_waitcnt':
                    m = re.search(r'vmcnt\((\d+)\)', inst.text)
                    if m: n = int(m.group(1)); vm = vm[len(vm) - n:] if n < len(vm) else vm
                    if m and n == 0: vm = []
                    m = re.search(r'lgkmcnt\((\d+)\)', inst.text)
                    if m:
                        n = int(m.group(1)); lg = lg[len(lg) - n:] if n < len(lg) else lg
                        if n == 0: lg = []
                    continue
                def apply():
                    nonlocal vm, lg
                    if 'vm' in inst.wait:
                        n = inst.wait['vm']; vm = vm[len(vm) - n:] if (n < len(vm) and n > 0) else ([] if n == 0 else vm)
                    if 'lgkm' in inst.wait:
                        n = inst.wait['lgkm']; lg = lg[len(lg) - n:] if (n < len(lg) and n > 0) else ([] if n == 0 else lg)
                apply()
                for idx, (pi, wr, tg) in enumerate(vm):
                    hit = bool(wr & touched) and not (pi.dummy and inst.dummy)
                    if inst.needs is not None and tg is not None:
                        nd = res(inst.needs, it)
                        if tg in nd: hit = True
                    if hit: need_vm = len(vm) - 1 - idx
                for idx, (pi, wr, tg) in enumerate(lg):
                    hit = bool(wr & touched)
                    if hit:
                        need_lg = len(lg) - 1 - idx
                        if any(p.cls == 'smem' for p, _, _ in lg): need_lg = 0
                if need_vm is not None:
                    need_vm = min(need_vm, 63)
                    inst.wait['vm'] = min(inst.wait.get('vm', 99), need_vm); changed = True
                if need_lg is not None:
                    need_lg = min(need_lg, 15)
                    inst.wait['lgkm'] = min(inst.wait.get('lgkm', 99), need_lg); changed = True
                apply()
                if inst.cls in ('vmem', 'store'): vm.append((inst, inst.wr, res(inst.tag, it) if inst.tag is not None else None))
                elif inst.cls == 'dma': vm.append((inst, set(), res(inst.tag, it)))
                elif inst.cls in ('lds', 'smem'): lg.append((inst, inst.wr, None))
                assert len(vm) <= 63, "vmcnt overflow at " + inst.text
                if len(lg) > 15 and inst.cls == 'lds':
                    pass
            if not changed: return
        raise RuntimeError("wait solve did not converge")

    def check_dma(self):
        def res(t, it): return t(*it) if callable(t) else t
        vm = []; lg = []
        landed_own, visible = set(), set()
        pending = {}
        slot_tag = {}
        reads_out = {}
        reads_done_since_barrier = {}
        last_read_complete_epoch = {}
        epoch = 0
        def retire_vm(n):
            nonlocal vm
            while len(vm) > n:
                tg = vm.pop(0)
                if tg is not None:
                    pending[tg] -= 1
        def retire_lg(n):
            nonlocal lg
            while len(lg) > n:
                tg = lg.pop(0)
                if tg is not None: last_read_complete_epoch[tg] = epoch; reads_out[tg] -= 1
        errs = []
        for inst, it in self.trace():
            if inst.mn == 's_waitcnt':
                m = re.search(r'vmcnt\((\d+)\)', inst.text)
                if m: retire_vm(int(m.group(1)))
                m = re.search(r'lgkmcnt\((\d+)\)', inst.text)
                if m: retire_lg(int(m.group(1)))
                continue
            if 'vm' in inst.wait: retire_vm(inst.wait['vm'])
            if 'lgkm' in inst.wait: retire_lg(inst.wait['lgkm'])
            if inst.mn == 's_barrier':
                epoch += 1
                for tg, c in pending.items():
                    if c == 0: visible.add(tg)
                    else: visible.discard(tg)
            if inst.cls == 'dma':
                tg = res(inst.tag, it); sl = res(inst.slot, it)
                if not isinstance(sl, tuple): sl = (sl, sl + 1)
                for osl in list(slot_tag):
                    prev = slot_tag[osl]
                    if osl[0] < sl[1] and sl[0] < osl[1] and prev != tg:
                        if reads_out.get(prev, 0) > 0 or last_read_complete_epoch.get(prev, -1) >= epoch:
                            errs.append(f"WAR: DMA {tg} into slot {sl} while reads of {prev} not barrier-separated: {inst.text} it={it}")
                        if prev not in last_read_complete_epoch: errs.append(f"overwrite of never-read stage {prev} by {tg}")
                        del slot_tag[osl]
                slot_tag[sl] = tg
                pending[tg] = pending.get(tg, 0) + 1
                visible.discard(tg)
                vm.append(tg)
            elif inst.cls in ('vmem', 'store'): vm.append(None)
            elif inst.cls == 'lds':
                tg = res(inst.tag, it) if inst.tag is not None else None
                if tg is not None:
                    if tg not in visible: errs.append(f"RAW: read of {tg} not visible: {inst.text} it={it}")
                    if tg not in slot_tag.values(): errs.append(f"stale: {tg} overwritten: {inst.text} it={it}")
                    reads_out[tg] = reads_out.get(tg, 0) + 1
                lg.append(tg)
            elif inst.cls == 'smem': lg.append(None)
        return errs

    def solve_hazards(self):
        for rnd in range(4):
            changed = False
            hist = []
            pos = 0
            for inst, it in self.trace(maxrep=3):
                if inst.cls == 'label': continue
                pos += inst.pad + (1 if inst.wait else 0)
                need = 0
                for (p, ppos) in reversed(hist):
                    dist = pos - ppos
                    if dist > 24: break
                    req = hazard(p, inst)
                    if req > dist: need = max(need, req - dist)
                if need:
                    inst.pad += need; pos += need; changed = True
                pos += inst.states()
                hist.append((inst, pos))
                if len(hist) > 64: hist.pop(0)
            if not changed: return
    def text(self):
        out = []
        for inst in self.flat():
            w = inst.wait
            pad = inst.pad
            while pad > 0:
                n = min(pad, 16); out.append(f"s_nop {n-1}"); pad -= n
            if w:
                s = "s_waitcnt"
                if 'vm' in w: s += f" vmcnt({w['vm']})"
                if 'lgkm' in w: s += f" lgkmcnt({w['lgkm']})"
                out.append(s)
            out.append(inst.text.replace(", ", ","))
        return "\n".join(out)

def isv(r): return r[0] in ('v', 'a')

def hazard(p, c):
    req = 0
    pw_v = {r for r in p.wr if isv(r)}
    pw_s = {r for r in p.wr if r[0] == 's'}
    if p.cls == 'valu':
        if c.cls == 'mfma' and (pw_v & c.rd): req = max(req, 2)
        if c.mn.startswith('v_permlane') and (pw_v & c.rd): req = max(req, 2)
        if c.mn in ('v_readfirstlane_b32', 'v_readlane_b32') and (pw_v & c.rd): req = max(req, 1)
        if p.mn in TRANS and c.cls == 'valu' and c.mn not in TRANS and (pw_v & c.rd): req = max(req, 1)
        if p.mn in TRANS and c.cls in ('valu',) and (pw_v & c.rd): req = max(req, 1)
        if pw_s:
            if c.cls in ('vmem', 'dma', 'store') and (pw_s & c.rd): req = max(req, 5)
            if c.cls == 'valu' and (pw_s & c.rd): req = max(req, 2 if not c.mn.startswith(('v_readlane', 'v_writelane')) else 4)
            if c.cls == 'salu' and (pw_s & c.rd): req = max(req, 1)
            if c.mn.startswith('s_cbranch_vcc') and ('s', 'vcc') in pw_s: req = max(req, 5)
            if ('s', 'exec') in pw_s and c.cls == 'mfma': req = max(req, 4)
        if 'dpp' in c.text or 'row_' in c.text or 'quad_perm' in c.text:
            if pw_v & c.rd: req = max(req, 2)
        if 'sdwa' in p.text or 'op_sel' in p.text:
            if c.cls == 'valu' and (pw_v & (c.rd | c.wr)): req = max(req, 1)
    if p.cls == 'salu':
        if ('s', 'm0') in p.wr and (c.cls == 'dma' or ('s', 'm0') in c.rd): req = max(req, 1)
    if p.cls == 'mfma':
        n = p.passes()
        big = {4: 8, 8: 12}[n]; ovl = {4: 6, 8: 10}[n]; war = {4: 3, 8: 7}[n]
        if c.cls == 'mfma':
            if p.wr & set(c.rdA): req = max(req, big)
            if p.wr & set(c.rdC):
                if not (set(c.rdC) == p.wr and c.passes() == n): req = max(req, ovl)
            elif p.wr & c.wr: req = max(req, ovl)
        elif c.cls in ('valu', 'vmem', 'store', 'lds', 'dma'):
            if p.wr & (c.rd | c.wr): req = max(req, big)
            if c.cls == 'valu' and (set(p.rdC) & c.wr): req = max(req, war)
    if p.cls == 'store' and ('x4' in p.mn or 'x3' in p.mn):
        if c.cls in ('valu', 'lds', 'vmem', 'mfma') and ({r for r in p.rd if isv(r)} & c.wr): req = max(req, 2)
    return req

def interleave(P, mfmas, fillers, start=0):
    for i, m in enumerate(mfmas):
        if isinstance(m, tuple): P.e(m[0], **m[1])
        else: P.e(m)
        for f in fillers.get(i, []):
            if isinstance(f, tuple): P.e(f[0], **f[1])
            else: P.e(f)

def kd(name, vgpr, accum, sgpr=102):
    return f""".section .rodata,"a"
.p2align 6
.amdhsa_kernel {name}
  .amdhsa_next_free_vgpr {vgpr}
  .amdhsa_next_free_sgpr {sgpr}
  .amdhsa_accum_offset {accum}
  .amdhsa_group_segment_fixed_size 0
  .amdhsa_kernarg_size 96
  .amdhsa_user_sgpr_count 2
  .amdhsa_user_sgpr_kernarg_segment_ptr 1
  .amdhsa_system_sgpr_workgroup_id_x 1
.end_amdhsa_kernel
"""


def _cls_of(x):
    t = x[0] if isinstance(x, tuple) else x
    mn = t.split()[0]
    if mn.startswith('ds_') or mn.startswith('buffer_') or mn.startswith('global_'): return 'mem'
    if mn in TRANS: return 'trans'
    if mn.startswith('v_'): return 'valu'
    return 'salu'

class Gaps:
    def __init__(self, mfmas, big):
        self.mf = mfmas; self.big = big
        self.n = len(mfmas)
        self.mem = [[] for _ in range(self.n)]
        self.salu = [[] for _ in range(self.n)]
        self.valu = [[] for _ in range(self.n)]
        self.resv = [0] * self.n
        self.aa = False
        self.vmgap = 0
        self.prev_vm = -99
    def put(self, g, items):
        if not isinstance(items, list): items = [items]
        for x in items:
            c = _cls_of(x)
            (self.mem if c == 'mem' else self.salu if c == 'salu' else self.valu)[g].append(x)
    def vcost(self, g): return sum(2 if _cls_of(x) == 'trans' else 1 for x in self.valu[g])
    def vm_near(self, g):
        if g - self.prev_vm < self.vmgap: return True
        for h in range(max(0, g - self.vmgap + 1), min(self.n, g + self.vmgap)):
            if any((y[0] if isinstance(y, tuple) else y).startswith('buffer_') for y in self.mem[h]): return True
        return False
    def last_vm(self):
        for h in range(self.n - 1, -1, -1):
            if any((y[0] if isinstance(y, tuple) else y).startswith('buffer_') for y in self.mem[h]): return h - self.n
        return -99
    def room(self, g, x):
        c = _cls_of(x)
        if c == 'mem' and self.vmgap and (x[0] if isinstance(x, tuple) else x).startswith('buffer_') and self.vm_near(g): return False
        nm, ns, v = len(self.mem[g]), len(self.salu[g]) + self.resv[g], self.vcost(g)
        if self.big:
            if c in ('mem', 'salu'): return nm + ns < 2 or (nm + ns < 3 and v <= 3)
            k = 2 if c == 'trans' else 1
            return v + k <= (5 if nm + ns <= 1 else 4 if nm + ns <= 2 else 3)
        tot = nm + ns + v
        if c == 'mem': return nm == 0 and tot < 2
        if c == 'salu': return tot < 2
        if c == 'trans': return tot == 0
        if self.aa and v == 1 and tot == 1 and _cls_of(self.valu[g][0]) == 'valu': return True
        return v == 0 and tot < 2
    def stream(self, ops, g0=0, g1=None):
        g1 = self.n if g1 is None else g1
        g = g0; i = 0
        lastc = None
        busy = {}
        lastvm = -1
        while i < len(ops) and g < g1:
            x = ops[i]; d = 0
            if isinstance(x, tuple) and len(x) == 3: d = x[2]; x = (x[0], x[1])
            if d and lastc is not None and g < lastc[0] + d: g = lastc[0] + d; continue
            c = _cls_of(x)
            t = x[0] if isinstance(x, tuple) else x
            ins = Inst(t)
            rank = {'mem': 0, 'salu': 1, 'valu': 2, 'trans': 2}[c]
            if t.startswith('buffer_'):
                h = max(g + (1 if (lastc is not None and lastc[0] == g and lastc[1] > 0) else 0), lastvm + 1)
                while h < g1 and not self.room(h, x): h += 1
                if h >= g1: break
                self.put(h, x); lastvm = h
                for r in ins.rd: busy[r] = max(busy.get(r, -1), h)
                for r in ins.wr: busy[('W',) + r] = h
                i += 1; continue
            lim = max([busy.get(r, -1) + (1 if c != 'salu' else 0) for r in ins.wr] + [busy.get(('W',) + r, -2) + 1 for r in (ins.rd | ins.wr)] + [-1])
            if g < lim: g = lim; continue
            if lastc is not None and lastc[0] == g and rank < lastc[1]: g += 1; continue
            if self.room(g, x):
                self.put(g, x); lastc = (g, rank); i += 1
            else: g += 1
        return ops[i:]
    def spread(self, ops, g0, g1, phase=0.5):
        nv = sum(1 for x in ops if _cls_of(x) == 'mem')
        step = (g1 - g0) / max(nv, 1)
        k = 0; pendin = []
        last = g0 - 1
        for x in ops:
            if _cls_of(x) != 'mem':
                pendin.append(x); continue
            tgt = max(int(g0 + (k + phase) * step), last + 1, g0 + (1 if pendin else 0))
            while not self.room(tgt, x): tgt += 1
            assert tgt < self.n, "spread overflow"
            g = max(last, g0)
            for y in pendin:
                while g < tgt - 1 and not self.room(g, y): g += 1
                g = min(g, tgt - 1)
                self.put(g, y)
            pendin = []
            self.put(tgt, x); last = tgt; k += 1
        g = last
        for y in pendin:
            while g < self.n - 1 and not self.room(g, y): g += 1
            self.put(g, y)
    def emit(self, P):
        for i, m in enumerate(self.mf):
            if isinstance(m, tuple): P.e(m[0], **m[1])
            else: P.e(m)
            for f in self.mem[i] + self.salu[i] + self.valu[i]:
                if isinstance(f, tuple): P.e(f[0], **f[1])
                else: P.e(f)
```

```python
from asmfw import *
from layout import *
import struct, math

def f32(x): return struct.unpack('<I', struct.pack('<f', x))[0]
LOG2E = f32(math.log2(math.e))
NLOG2E = LOG2E ^ 0x80000000
QSCALE = f32(math.log2(math.e) / math.sqrt(128.0))
SLOT = 24576
NSLOT = 6
LDS_BYTES = 163840
def z_base(z): return (z % 10) * 16384
def z_rng(z): return (z_base(z), z_base(z) + 16384)
SPIN_MAX = 0x80000
OOB = 0x7ff00000
DROP = 0x30000

WS, WQ, GU, KS, VS, XS, WD, WO, OUT = 8, 12, 16, 20, 24, 28, 32, 36, 40
def R(b): return f"s[{b}:{b+3}]"
sW, sJ, sR, sQ, sTC, sN = 44, 45, 46, 47, 48, 49

def srd(P, d, lo, size):
    P.e(f"s_mov_b64 s[{d}:{d+1}], s[{lo}:{lo+1}]\ns_mov_b32 s{d+2}, {size:#x}\ns_mov_b32 s{d+3}, 0x20000")

def allsum2(P, regs, tmps):
    for m in ("quad_perm:[1,0,3,2]", "quad_perm:[2,3,0,1]", "row_half_mirror", "row_mirror"):
        for v in regs: P.e(f"v_add_f32 v{v}, v{v}, v{v} {m} row_mask:0xf bank_mask:0xf")
    for sw in ("v_permlane16_swap_b32", "v_permlane32_swap_b32"):
        for v, t in zip(regs, tmps): P.e(f"v_mov_b32 v{t}, v{v}")
        for v, t in zip(regs, tmps): P.e(f"{sw} v{v}, v{t}")
        for v, t in zip(regs, tmps): P.e(f"v_add_f32 v{v}, v{v}, v{t}")

def mixin(P, main, side, every):
    side = list(side)
    for n, x in enumerate(main):
        if n % every == 0 and side:
            for y in side.pop(0): P.e(y[0], **y[1])
        P.e(x) if isinstance(x, str) else P.e(x[0], **x[1])
    for g in side:
        for y in g: P.e(y[0], **y[1])

def groups(ops):
    out, cur = [], []
    for x in ops:
        cur.append(x)
        if x[0].startswith('buffer_'): out.append(cur); cur = []
    if cur: out[-1] += cur
    return out

def gen_mega(name="mega_kernel", stamps=False, opt=None):
    opt = opt or {}
    assert not opt.get('rot')
    P = Prog()
    NTW = " nt" if opt.get('ntw') else ""
    NTP = " nt" if opt.get('ntp') else ""
    NTX = " nt" if opt.get('ntx') else ""
    nstamp = [0]
    VST = 3
    P.stamp_names = []
    def stamp(label):
        if not stamps: return
        sr = 100 if nstamp[0] < 2 else 70
        P.e(f"s_memtime s[{sr}:{sr+1}]\ns_waitcnt lgkmcnt(0)\nv_writelane_b32 v{VST}, s{sr}, {nstamp[0]}")
        P.stamp_names.append(label); nstamp[0] += 1
    def emit_list(l):
        for x in l: P.e(x) if isinstance(x, str) else P.e(x[0], **x[1])
    QA, UA = 0, 128
    GA, XR, WR = 144, 80, 48
    VL16, VLN = 1, 2
    VX = 4
    VDQ, VDG, VDS = 5, 6, 7
    AP0, AP1, AS = 8, 9, 10
    VDK, VDV = 11, 12
    AK0, AK1, AV = 13, 14, 15
    LN0 = 16
    VH0, VH1, VO, VF = 20, 21, 22, 23
    TMP = 24
    VD = 32
    AW = 36
    MX = 44
    VNON, VPOLL = 46, 47
    QF, SB, PB, NM = 80, 144, 208, 48
    KVR = 128
    P.e(f"s_cmp_ge_u32 s2, 256\ns_cbranch_scc1 L_end")
    P.e("s_load_dwordx8 s[60:67], s[0:1], 0")
    P.e("s_load_dwordx2 s[70:71], s[0:1], 88")
    P.e("s_load_dwordx8 s[72:79], s[0:1], 48")
    P.e("s_load_dwordx2 s[68:69], s[0:1], 32")
    P.e("s_getpc_b64 s[4:5]\nL_pc:")
    if stamps:
        P.e(f"s_memrealtime s[100:101]\nv_mov_b32 v{VST}, 0\ns_waitcnt lgkmcnt(0)\nv_writelane_b32 v{VST}, s100, 30")
        stamp("entry")
    P.e(f"v_lshrrev_b32 v24, 6, v0\nv_and_b32 v{VLN}, 63, v0\nv_lshlrev_b32 v{VL16}, 4, v{VLN}")
    P.e(f"v_readfirstlane_b32 s{sW}, v24")
    if opt.get('badmap'): P.e("s_lshr_b32 s50, s2, 5\ns_and_b32 s51, s2, 31")
    else: P.e("s_and_b32 s50, s2, 7\ns_lshr_b32 s51, s2, 3")
    P.e(f"s_and_b32 s{sR}, s50, 1\ns_lshl_b32 s{sR}, s{sR}, 2\ns_lshr_b32 s52, s51, 3\ns_add_u32 s{sR}, s{sR}, s52")
    P.e(f"s_lshr_b32 s{sQ}, s50, 1\ns_and_b32 s{sTC}, s51, 7\ns_lshl_b32 s{sJ}, s{sQ}, 3\ns_add_u32 s{sJ}, s{sJ}, s{sTC}")
    P.e(f"s_lshl_b32 s50, s{sR}, 8\ns_lshl_b32 s52, s{sJ}, 3\ns_add_u32 s50, s50, s52")
    P.e(f"s_lshl_b32 s52, s{sW}, 1\ns_add_u32 s52, s52, s50\ns_lshl_b32 s52, s52, 11")
    P.e(f"s_mov_b32 s{XS+2}, 0x400000\ns_mov_b32 s{XS+3}, 0x20000\ns_mov_b32 s{WS+2}, {WS_SIZE:#x}\ns_mov_b32 s{WS+3}, 0x20000")
    P.e("s_mov_b32 s6, L_code_end-L_pc\ns_mov_b32 s7, 0x20000\ns_lshl_b32 s51, s51, 15")
    P.e(f"v_lshlrev_b32 v25, 7, v0\nv_mov_b32 v28, 0\ns_lshl_b32 s53, s{sR}, 7\ns_add_u32 s54, s53, {FL_EPOCH:#x}")
    P.e("s_waitcnt lgkmcnt(0)")
    stamp("karg")
    P.e(f"s_mov_b64 s[{XS}:{XS+1}], s[60:61]\ns_mov_b64 s[{WS}:{WS+1}], s[70:71]")
    LX = 144
    for e in range(2):
        for i in range(2):
            P.e(f"buffer_load_dwordx4 v[{LX+e*8+4*i}:{LX+e*8+4*i+3}], v{VL16}, {R(XS)}, s52 offen offset:{e*2048+i*1024}{NTX}")
    P.e(f"buffer_load_dword v29, v28, {R(WS)}, s54 offen sc1")
    P.e(f"buffer_load_dword v47, v25, s[4:7], s51 offen")
    def slot_adv():
        return [(f"s_add_u32 s86, s86, {SLOT}", {}), (f"s_cmp_eq_u32 s86, {SLOT*NSLOT}", {}), (f"s_cselect_b32 s86, 0, s86", {})]
    def wdma(tag, slot):
        kw = dict(tag=tag, slot=slot)
        g = [("s_add_u32 s88, s86, s80", {}), ("s_add_u32 s89, s86, s81", {})]
        for b in range(2):
            g += [(f"s_add_u32 m0, s88, {b*2048 - 64*b}", {}), (f"buffer_load_dwordx4 v{VDQ}, {R(WQ)}, s83 offen offset:{64*b}{NTW} lds", kw)]
        for b in range(3):
            g += [(f"s_add_u32 m0, s89, {b*2048 - 64*b}", {}), (f"buffer_load_dwordx4 v{VDG}, {R(GU)}, s84 offen offset:{64*b}{NTW} lds", kw)]
        g += [("s_add_u32 m0, s86, s82", {}), (f"buffer_load_dwordx4 v{VDS}, {R(GU)}, s84 offen{NTW} lds", kw)]
        g += [("s_add_u32 s83, s83, 0x40000", {}), (f"s_add_u32 s84, s84, {32*7168:#x}", {})]
        return g
    def wrng(step): return ((step % NSLOT)*SLOT, (step % NSLOT)*SLOT + SLOT) if step < 32 else (DROP + step*SLOT, DROP + step*SLOT + SLOT)
    P.e(f"v_lshrrev_b32 v25, 2, v{VLN}\nv_and_b32 v26, 3, v{VLN}\ns_mov_b32 s90, 0xffff0000")
    F = [176, 192]
    SM, VR, T1 = [208, 210], [212, 214], [216, 218]
    pk = lambda r: f"v[{r}:{r+1}]"
    LNP = Prog()
    for e in range(2):
        for i in range(8): LNP.e(f"v_lshlrev_b32 v{F[e]+2*i}, 16, v{LX+e*8+i}\nv_and_b32 v{F[e]+2*i+1}, s90, v{LX+e*8+i}")
    for e in range(2): LNP.e(f"v_pk_add_f32 {pk(SM[e])}, {pk(F[e])}, {pk(F[e]+2)}")
    for i in range(2, 8):
        for e in range(2): LNP.e(f"v_pk_add_f32 {pk(SM[e])}, {pk(SM[e])}, {pk(F[e]+2*i)}")
    for e in range(2): LNP.e(f"v_add_f32 v{SM[e]}, v{SM[e]}, v{SM[e]+1}")
    allsum2(LNP, SM, T1)
    for e in range(2): LNP.e(f"v_mul_f32 v{SM[e]}, 0xba800000, v{SM[e]}")
    for e in range(2): LNP.e(f"v_mov_b32 v{SM[e]+1}, v{SM[e]}")
    for i in range(8):
        for e in range(2): LNP.e(f"v_pk_add_f32 {pk(T1[e])}, {pk(F[e]+2*i)}, {pk(SM[e])}")
        for e in range(2): LNP.e(f"v_pk_mul_f32 {pk(VR[e])}, {pk(T1[e])}, {pk(T1[e])}" if i == 0 else f"v_pk_fma_f32 {pk(VR[e])}, {pk(T1[e])}, {pk(T1[e])}, {pk(VR[e])}")
    for e in range(2): LNP.e(f"v_add_f32 v{VR[e]}, v{VR[e]}, v{VR[e]+1}")
    allsum2(LNP, VR, T1)
    for e in range(2): LNP.e(f"v_mul_f32 v{VR[e]}, 0x3a800000, v{VR[e]}")
    for e in range(2): LNP.e(f"v_cvt_pk_bf16_f32 v{T1[e]}, v{SM[e]}, v{VR[e]}")
    for e in range(2): LNP.e(f"v_lshlrev_b32 v{SM[e]}, 16, v{T1[e]}\nv_and_b32 v{VR[e]}, s90, v{T1[e]}")
    for op in ("v_add_f32 v{v}, 0x3727c5ac, v{v}", "v_cvt_pk_bf16_f32 v{v}, v{v}, v{v}", "v_and_b32 v{v}, s90, v{v}", "v_sqrt_f32 v{v}, v{v}",
               "v_cvt_pk_bf16_f32 v{v}, v{v}, v{v}", "v_and_b32 v{v}, s90, v{v}", "v_rcp_f32 v{v}, v{v}"):
        for e in range(2): LNP.e(op.format(v=VR[e]))
    for e in range(2): LNP.e(f"v_mov_b32 v{SM[e]+1}, v{SM[e]}\nv_mov_b32 v{VR[e]+1}, v{VR[e]}")
    PO = 160
    for i in range(8):
        for e in range(2): LNP.e(f"v_pk_add_f32 {pk(F[e]+2*i)}, {pk(F[e]+2*i)}, {pk(SM[e])}")
        for e in range(2): LNP.e(f"v_cvt_pk_bf16_f32 v{PO+e*8+i}, v{F[e]+2*i}, v{F[e]+2*i+1}")
        for e in range(2): LNP.e(f"v_lshlrev_b32 v{F[e]+2*i}, 16, v{PO+e*8+i}\nv_and_b32 v{F[e]+2*i+1}, s90, v{PO+e*8+i}")
        for e in range(2): LNP.e(f"v_pk_mul_f32 {pk(F[e]+2*i)}, {pk(F[e]+2*i)}, {pk(VR[e])}")
        for e in range(2): LNP.e(f"v_cvt_pk_bf16_f32 v{PO+e*8+i}, v{F[e]+2*i}, v{F[e]+2*i+1}")
    lnops = [i.text for i in LNP.flat()]
    nq = len(lnops)
    cuts = [0, 48, 48 + (nq-48)//3, 48 + 2*(nq-48)//3, nq]
    LNB = SLOT * NSLOT
    P.e(f"v_and_b32 v24, 1, v{VLN}\nv_and_b32 v27, 3, v25\nv_lshl_add_u32 v27, v24, 2, v27")
    P.e(f"s_lshl_b32 s57, s{sW}, 1\nv_xor_b32 v27, s57, v27")
    P.e(f"v_lshlrev_b32 v30, 9, v25\nv_lshl_add_u32 v30, v24, 8, v30\nv_bfe_u32 v24, v{VLN}, 1, 1\nv_lshl_add_u32 v30, v24, 3, v30")
    P.e(f"v_add_u32 v30, {LNB}, v30\nv_lshl_add_u32 v{AP0}, v27, 4, v30\nv_xor_b32 v{AP1}, 16, v{AP0}")
    P.e(f"v_lshlrev_b32 v{AS}, 4, v0\nv_add_u32 v{AS}, {LNB}, v{AS}")
    P.e("v_lshrrev_b32 v24, 5, v0\nv_bfe_u32 v27, v0, 3, 2\nv_and_b32 v30, 3, v24\nv_bfe_u32 v31, v0, 4, 1\nv_lshl_add_u32 v30, v31, 2, v30")
    P.e(f"v_and_b32 v31, 7, v0\nv_xor_b32 v30, v30, v31\nv_lshlrev_b32 v{VX}, 17, v24\nv_lshl_add_u32 v{VX}, v27, 8, v{VX}\nv_lshl_add_u32 v{VX}, v30, 4, v{VX}")
    P.e("s_lshr_b32 s51, s50, 4\ns_lshl_b32 s51, s51, 10\ns_and_b32 s56, s50, 15\ns_lshl_b32 s56, s56, 4\ns_add_u32 s51, s51, s56")
    if XN_OFF: P.e(f"s_add_u32 s51, s51, {XN_OFF:#x}")
    srd(P, WQ, 66, 1024*4096*2)
    P.e(f"s_cmp_lt_u32 s{sW}, 2\ns_cselect_b32 s{GU}, s72, s74\ns_cselect_b32 s{GU+1}, s73, s75")
    P.e(f"s_mov_b32 s{GU+2}, {1024*3584*2:#x}\ns_mov_b32 s{GU+3}, 0x20000")
    P.e(f"s_and_b32 s54, s{sW}, 1\ns_lshr_b32 s55, s{sW}, 1")
    P.e("s_lshl_b32 s56, s54, 4\nv_add_u32 v24, s56, v25")
    P.e(f"v_bfe_u32 v30, v{VLN}, 4, 1\nv_lshlrev_b32 v30, 1, v30\nv_xor_b32 v30, v30, v26\nv_lshlrev_b32 v30, 4, v30")
    P.e(f"v_lshl_add_u32 v{VDQ}, v24, 13, v30")
    P.e(f"s_lshl_b32 s56, s{sJ}, 8\ns_lshl_b32 s57, s55, 7\ns_add_u32 s56, s56, s57\nv_add_u32 v{VDQ}, s56, v{VDQ}")
    P.e("s_movk_i32 s58, 7168\nv_mul_lo_u32 v27, v24, s58")
    P.e(f"s_mul_i32 s56, s{sJ}, 224\ns_and_b32 s59, s{sJ}, 1\ns_lshl_b32 s57, s59, 5\ns_add_u32 s57, s57, s56")
    P.e(f"v_add3_u32 v{VDG}, v27, v30, s57")
    P.e(f"v_bfe_u32 v24, v{VLN}, 1, 4\ns_lshl_b32 s57, s54, 4\nv_add_u32 v24, s57, v24\nv_mul_lo_u32 v27, v24, s58")
    P.e(f"v_and_b32 v30, 1, v{VLN}\nv_lshlrev_b32 v30, 4, v30")
    P.e("s_cmp_eq_u32 s59, 0\ns_cselect_b32 s57, 192, 0\ns_add_u32 s57, s57, s56")
    P.e(f"v_add3_u32 v{VDS}, v27, v30, s57")
    P.e(f"v_mov_b32 v30, {OOB:#x}\nv_cmp_gt_u32 vcc, 32, v{VLN}\nv_cndmask_b32 v{VDS}, v30, v{VDS}, vcc")
    P.e("s_lshl_b32 s80, s55, 12\ns_lshl_b32 s57, s54, 10\ns_add_u32 s80, s80, s57")
    P.e("s_lshl_b32 s81, s55, 13\ns_add_u32 s81, s81, 8192\ns_add_u32 s81, s81, s57\ns_add_u32 s82, s81, 6144")
    if not opt.get('rot'): P.e(f"s_mov_b32 s83, 0\ns_mov_b32 s84, 0\ns_mov_b32 s85, {XN_OFF:#x}")
    else: P.e(f"s_lshr_b32 s85, s{sR}, 2\ns_lshl_b32 s83, s85, 22\ns_mul_i32 s84, s85, {16*32*7168:#x}\ns_lshl_b32 s85, s85, 21\ns_add_u32 s85, s85, {XN_OFF:#x}")
    P.e("s_mov_b32 s86, 0\ns_mov_b32 s87, 0")
    VPF, VPD = 44, 45
    P.e(f"s_and_b32 s56, s{sR}, 3\ns_lshl_b32 s56, s56, 3\nv_mov_b32 v30, {OOB:#x}\ns_mov_b32 s99, 0x20000")
    P.e(f"s_cmp_eq_u32 s{sW}, 0\ns_cbranch_scc1 L_pf0\ns_cmp_eq_u32 s{sW}, 3\ns_cbranch_scc1 L_pf3")
    P.e(f"v_add_u32 v24, s56, v25\nv_mul_lo_u32 v24, v24, s58\nv_lshl_add_u32 v24, v26, 7, v24\ns_mul_i32 s57, s{sJ}, 224\ns_andn2_b32 s57, s57, 127\nv_add_u32 v24, s57, v24")
    P.e(f"v_cmp_gt_u32 vcc, 3, v26\nv_cndmask_b32 v24, v30, v24, vcc\nv_cmp_gt_u32 vcc, 32, v{VLN}\nv_cndmask_b32 v{VPF}, v30, v24, vcc")
    P.e(f"s_mov_b64 s[96:97], s[{GU}:{GU+1}]\ns_mov_b32 s98, s{GU+2}\ns_mov_b32 s72, s84\ns_mov_b32 s73, {32*7168:#x}\ns_mov_b32 s74, {1024*7168:#x}\ns_mov_b32 s75, {OOB:#x}\ns_branch L_pfj")
    P.e("L_pf0:")
    P.e(f"v_lshrrev_b32 v24, 1, v{VLN}\nv_add_u32 v24, s56, v24\nv_lshlrev_b32 v24, 13, v24\nv_and_b32 v27, 1, v{VLN}\nv_lshl_add_u32 v24, v27, 7, v24\ns_lshl_b32 s57, s{sJ}, 8\nv_add_u32 v24, s57, v24")
    P.e(f"v_cmp_gt_u32 vcc, 16, v{VLN}\nv_cndmask_b32 v{VPF}, v30, v24, vcc")
    P.e(f"s_mov_b64 s[96:97], s[{WQ}:{WQ+1}]\ns_mov_b32 s98, s{WQ+2}\ns_mov_b32 s72, s83\ns_mov_b32 s73, 0x40000\ns_mov_b32 s74, 0x800000\ns_mov_b32 s75, {OOB:#x}\ns_branch L_pfj")
    P.e("L_pf3:")
    P.e(f"v_lshlrev_b32 v24, 7, v{VLN}\ns_lshl_b32 s57, s{sR}, 14\nv_add_u32 v24, s57, v24\ns_lshl_b32 s57, s{sTC}, 11\nv_add_u32 v24, s57, v24")
    P.e(f"v_cmp_gt_u32 vcc, 16, v{VLN}\nv_cndmask_b32 v{VPF}, v30, v24, vcc")
    P.e(f"s_mov_b64 s[96:97], s[{WS}:{WS+1}]\ns_mov_b32 s98, 0\ns_sub_u32 s72, s85, 0x20000\ns_mov_b32 s73, 0x20000\ns_mov_b32 s74, {XN_OFF+XN_SIZE:#x}\ns_mov_b32 s75, {OOB:#x}")
    P.e("L_pfj:")
    def pfop():
        return [(f"buffer_load_dword v{VPD}, v{VPF}, s[96:99], s72 offen", dict(dummy=True)),
                ("s_add_u32 s72, s72, s73", {}), ("s_cmp_eq_u32 s72, s74", {}), ("s_cselect_b32 s72, s75, s72", {})]
    PFD = opt.get('pfd', 6)
    DAH = opt.get('dah', 3)
    PF0 = opt.get('pf0', 2)
    for st in range(PF0): emit_list(pfop())
    dm = []
    for st in range(DAH): dm += wdma(('W', st), wrng(st)) + slot_adv()
    dmg = groups(dm)
    for g in dmg[:opt.get('early', 0)]: emit_list(g)
    if opt.get('dry', False):
        P.e(f"s_cmp_eq_u32 s{sW}, 1\ns_cbranch_scc1 L_lnq1\ns_cmp_eq_u32 s{sW}, 2\ns_cbranch_scc1 L_lnq2\ns_cmp_eq_u32 s{sW}, 3\ns_cbranch_scc1 L_lnq3")
    P.e("L_lnreal:")
    P.e("s_cmp_eq_u32 s90, 0")
    stamp("issued")
    if stamps:
        P.e(f"v_mov_b32 v{F[0]}, v{LX+15}"); stamp("x_in")
    for qd in range(4):
        if qd: P.e(f"L_lnq{qd}:")
        for x in lnops[cuts[qd]:cuts[qd+1]]: P.e(x)
        if qd: P.e("s_cbranch_scc1 L_lnreal")
    for e in range(2):
        b = PO + e*8
        P.e(f"ds_write2_b64 v{AP0+e}, v[{b}:{b+1}], v[{b+2}:{b+3}] offset0:0 offset1:16")
        P.e(f"ds_write_b64 v{AP0+e}, v[{b+4}:{b+5}] offset:8192\nds_write_b64 v{AP0+e}, v[{b+6}:{b+7}] offset:8320")
    P.e(f"v_readfirstlane_b32 s57, v29")
    P.e(f"v_mov_b32 v30, {OOB:#x}\nv_cmp_eq_u32 vcc, 0, v0\nv_cndmask_b32 v{VF}, v30, v28, vcc")
    stamp("ln_math")
    P.e("s_waitcnt lgkmcnt(0)\ns_barrier")
    for i in range(4): P.e(f"ds_read_b128 v[{LX+4*i}:{LX+4*i+3}], v{AS} offset:{i*4096}")
    P.e(f"s_mul_i32 s{sN}, s57, 0x9e3779b1\ns_xor_b32 s{sN}, s{sN}, 0x5bd1e995\ns_add_u32 s57, s57, 1")
    P.e(f"v_mov_b32 v{VNON}, s{sN}\nv_mov_b32 v29, s57")
    for i in range(4):
        P.e(f"buffer_store_dwordx4 v[{LX+4*i}:{LX+4*i+3}], v{VX}, {R(WS)}, s51 offen sc1")
        if i < 3: P.e("s_add_u32 s51, s51, 0x100000")
    stamp("ln_stored")
    P.e(f"s_lshl_b32 s56, s{sJ}, 2\ns_add_u32 s56, s56, s53\ns_add_u32 s56, s56, {FL_LN:#x}")
    P.e("s_waitcnt vmcnt(0)\ns_barrier")
    P.e(f"buffer_store_dword v{VNON}, v{VF}, {R(WS)}, s56 offen sc1")
    stamp("ln_flag")
    srd(P, KS, 62, 0x200000); srd(P, VS, 64, 0x200000); srd(P, WD, 76, 3584*2048); srd(P, WO, 68, 4096*2048); srd(P, OUT, 78, 0x400000)
    st2 = []
    st2 += f"s_lshl_b32 s56, s{sR}, 2|s_add_u32 s56, s56, s{sW}|s_lshl_b32 s56, s56, 12|v_add_u32 v{VX}, s56, v{VL16}".split('|')
    st2 += f"v_lshrrev_b32 v24, 4, v{VLN}|v_bfe_u32 v25, v{VLN}, 2, 2".split('|')
    st2 += "v_lshl_add_u32 v27, v24, 2, v25|v_lshlrev_b32 v30, 6, v27|v_lshl_add_u32 v30, v26, 3, v30".split('|')
    st2 += f"v_and_b32 v31, 1, v24|v_lshl_add_u32 v{AP0}, v31, 5, v30|v_xor_b32 v{AP1}, 32, v{AP0}|v_lshlrev_b32 v{AS}, 3, v{VLN}".split('|')
    st2 += "v_and_b32 v31, 7, v27|v_lshlrev_b32 v30, 8, v27|v_lshl_add_u32 v30, v26, 3, v30|v_lshl_add_u32 v30, v31, 5, v30".split('|')
    st2.append(f"v_add_u32 v30, {z_base(16)}, v30")
    for t in range(8): st2.append(f"v_xor_b32 v{AW+t}, {t*32}, v30")
    st2 += f"v_lshrrev_b32 v27, 2, v{VLN}|s_lshl_b32 s56, s{sW}, 4|v_add_u32 v27, s56, v27|v_lshlrev_b32 v27, 8, v27".split('|')
    st2 += f"v_lshl_add_u32 v{VDV}, v26, 4, v27|v_xor_b32 v31, v24, v26|v_lshl_add_u32 v{VDK}, v31, 4, v27".split('|')
    st2 += f"s_lshl_b32 s91, s{sW}, 10|s_lshl_b32 s92, s{sW}, 12".split('|')
    st2 += f"v_add_u32 v27, s56, v24|v_and_b32 v30, 15, v{VLN}|v_lshlrev_b32 v31, 1, v24|v_xor_b32 v30, v30, v31|v_xor_b32 v31, 8, v30".split('|')
    st2 += f"s_lshl_b32 s57, s{sTC}, 8|v_lshlrev_b32 v27, 11, v27|v_add_u32 v27, s57, v27".split('|')
    st2 += f"v_lshl_add_u32 v{VD}, v30, 4, v27|v_lshl_add_u32 v{VD+1}, v31, 4, v27|v_add_u32 v{VD+1}, 0x2000, v{VD+1}".split('|')
    st2 += f"v_add_u32 v{VD+2}, 0x4000, v{VD}|v_add_u32 v{VD+3}, 0x4000, v{VD+1}".split('|')
    st2 += f"s_lshl_b32 s56, s{sR}, 3|s_lshl_b32 s57, s{sW}, 1|s_add_u32 s56, s56, s57|s_lshl_b32 s56, s56, 12".split('|')
    st2 += f"v_add_u32 v{VH0}, s56, v{VL16}|v_add_u32 v{VH1}, 0x1000, v{VH0}".split('|')
    st2 += f"v_and_b32 v27, 15, v{VLN}|v_lshlrev_b32 v27, 4, v27|v_and_b32 v30, 1, v24|v_lshl_add_u32 v27, v30, 10, v27".split('|')
    st2 += f"v_lshrrev_b32 v30, 5, v{VLN}|v_lshl_add_u32 v27, v30, 8, v27|v_add_u32 v{VO}, s56, v27".split('|')
    st2 += f"s_mov_b32 s93, {(-(NSLOT-1)*SLOT) & 0xffffffff:#x}|s_mov_b32 s94, {SLOT}|s_mov_b32 s100, 0|s_mov_b32 s95, 0".split('|')
    st2 += f"s_lshl_b32 s50, s{sQ}, 19|s_add_u32 s50, s50, {1536*256:#x}|s_mul_i32 s52, s{sQ}, {896*2048:#x}".split('|')
    st2 += [f"v_mov_b32 v{WR+i}, 0" for i in range(4)]
    PF1 = opt.get('pf1', 4)
    for st in range(PF0, PF1): emit_list(pfop())
    mixin(P, st2, dmg[:12], 5)
    ZR = f"v[{WR}:{WR+3}]"
    for i in range(15): P.e(f"v_mfma_f32_32x32x16_bf16 a[{16*i}:{16*i+15}], {ZR}, {ZR}, 0")
    for i in range(7): P.e(f"v_mfma_f32_32x32x16_bf16 v[{GA+16*i}:{GA+16*i+15}], {ZR}, {ZR}, 0")
    stamp("setup")
    P.e(f"s_cmp_lg_u32 s{sW}, 0\ns_cbranch_scc1 L_lnjoin")
    P.e(f"v_and_b32 v27, 31, v{VLN}\nv_lshlrev_b32 v27, 2, v27\ns_add_u32 s56, s53, {FL_LN:#x}")
    P.e("L_lnpoll:")
    P.e(f"buffer_load_dword v{VPOLL}, v27, {R(WS)}, s56 offen sc1")
    P.e("s_waitcnt vmcnt(0)")
    P.e(f"v_cmp_ne_u32 vcc, s{sN}, v{VPOLL}")
    P.e(f"s_add_u32 s100, s100, 1\ns_cmp_gt_u32 s100, {SPIN_MAX}\ns_cbranch_scc1 L_lnjoin")
    P.e("s_cbranch_vccnz L_lnpoll")
    P.e("L_lnjoin:")
    P.e("s_waitcnt vmcnt(0)\ns_barrier")
    stamp("ln_done")
    def xload(st):
        return [(f"buffer_load_dwordx4 v[{XR+st*16+4*f}:{XR+st*16+4*f+3}], v{VX}, {R(WS)}, s85 offen offset:{1024*f}", {}) for f in range(4)] + \
               [("s_add_u32 s85, s85, 0x20000", {})]
    for st in range(3): emit_list(xload(st))
    for g in dmg[12:]: emit_list(g)
    for st in range(PF1, PFD): emit_list(pfop())
    P.e(f"s_cmp_eq_u32 s{sW}, 3\ns_cselect_b32 s98, s{WS+2}, s98")
    P.e(f"s_add_u32 s56, s53, {FL_EPOCH:#x}\ns_cmp_eq_u32 s{sJ}, 0\ns_cselect_b32 s56, s56, {OOB:#x}\ns_lshl_b32 s53, s{sQ}, 21")
    P.e(f"buffer_store_dword v29, v{VF}, {R(WS)}, s56 offen sc1")

    tiles = [('q', t) for t in range(8)] + [('g', t) for t in range(7)] + [('u', t) for t in range(7)]
    NT = len(tiles)
    def acc(kind, t, mt):
        if kind == 'q': b = QA + (t*4+mt)*4; return f"a[{b}:{b+3}]"
        if kind == 'g': b = GA + (t*4+mt)*4; return f"v[{b}:{b+3}]"
        b = UA + (t*4+mt)*4; return f"a[{b}:{b+3}]"
    def wread(f, ring, tag):
        kind, t = tiles[f]
        base = {'q': 0, 'g': 8192, 'u': 16384}[kind]
        r = WR + ring*4
        if kind != 'q' and t == 6: a, off = AS, base + 6144
        else: a, off = (AP0 if t % 2 == 0 else AP1), base + (t//2)*2048
        return [(f"ds_read_b64_tr_b16 v[{r}:{r+1}], v{a} offset:{off}", dict(tag=tag)),
                (f"ds_read_b64_tr_b16 v[{r+2}:{r+3}], v{a} offset:{off+1024}", dict(tag=tag))]
    LEAD = 5
    for f in range(LEAD): emit_list(wread(f, f % 8, ('W', 0)))
    def kstep(st):
        stepfn = lambda k: k*4 + st
        tg = lambda d: (lambda k: ('W', stepfn(k) + d))
        tgr = lambda d: (lambda k: ('W', stepfn(k) + d) if stepfn(k) + d < 32 else None)
        ring0 = (st * NT) % 8
        mf = []
        for f in range(NT):
            kind, t = tiles[f]
            wr = WR + ((ring0 + f) % 8) * 4
            for mt in range(4):
                xr = XR + st*16 + mt*4
                kw = {}
                if f == 0 and mt == 0: kw = dict(rdx=f"v[{XR+st*16}:{XR+st*16+15}]")
                elif f % 2 == 1 and mt == 0 and f + 1 < NT:
                    w2 = WR + ((ring0 + f + 1) % 8) * 4; kw = dict(rdx=f"v[{w2}:{w2+3}]")
                a = acc(kind, t, mt)
                mf.append((f"v_mfma_f32_16x16x32_bf16 {a}, v[{wr}:{wr+3}], v[{xr}:{xr+3}], {a}", kw))
        G = Gaps(mf, False)
        for f in range(1, NT, 2): G.resv[4*f-1] = 1
        G.resv[87] = 1
        for f in range(NT):
            ff = f + LEAD
            rd = wread(ff, (ring0 + ff) % 8, tg(0)) if ff < NT else wread(ff-NT, (ring0 + ff) % 8, tgr(1))
            G.put(4*f, rd[0]); G.put(4*f+2, rd[1])
        G.put(53, [(f"s_add_u32 s87, s87, {SLOT}", {}), (f"s_cmp_eq_u32 s87, {SLOT*NSLOT}", {}), ("s_cselect_b32 s87, 0, s87", {}), ("s_cselect_b32 s54, s93, s94", {})])
        G.put(61, f"v_add_u32 v{AP0}, s54, v{AP0}"); G.put(65, f"v_add_u32 v{AP1}, s54, v{AP1}"); G.put(69, f"v_add_u32 v{AS}, s54, v{AS}")
        G.put(4*(NT-LEAD)-1, ("s_barrier", dict(needs=lambda k: [('W', stepfn(k) + 1)])))
        G.put(79, [("s_cmp_eq_u32 s83, 0x800000", {}), ("s_cselect_b32 s83, 0, s83", {}), ("s_cselect_b32 s84, 0, s84", {})])
        G.put(81, slot_adv())
        if st == (31 - DAH) % 4: G.put(82, [(f"s_cmp_eq_u32 s55, {8 - (31 - DAH) // 4}", {}), (f"s_cselect_b32 s83, s66, s83", {}), (f"s_cselect_b32 s84, s66, s84", {})])
        G.put(83, [("s_cmp_ge_u32 s83, 0x800000", {}), (f"s_cselect_b32 s86, {DROP:#x}, s86", {})])
        G.put(85, [(f"s_cmp_eq_u32 s85, {XN_OFF+XN_SIZE:#x}", {}), (f"s_cselect_b32 s85, {XN_OFF:#x}, s85", {})])
        if st == 0: G.put(77, [("s_cmp_eq_u32 s55, 1", {}), ("s_cselect_b32 s85, s66, s85", {})])
        wd = wdma(tg(DAH), lambda k: wrng(stepfn(k) + DAH))
        xl = xload((st+3) % 4)
        ops = wd[:6] + xl[:1] + wd[6:8] + xl[1:2] + wd[8:10] + xl[2:3] + wd[10:12] + xl[3:] + wd[12:]
        if not opt.get('noxfirst'): ops = xl + wd
        if not opt.get('nopf1'):
            pf = pfop(); ops = xl + wd + pf[:1]
            G.put(77 if st else 75, pf[1:])
        if st == 1: ops += [(f"buffer_load_dword v{TMP}, v0, s[4:7], s57 offen", dict(dummy=True))]
        if st == 2: ops += [(f"buffer_load_dword v{TMP+1}, v0, s[60:63], s65 offen", dict(dummy=True))]
        G.spread(ops, 0, 74)
        if st == 0: G.put(86, ["s_cmp_eq_u32 s55, 2", f"s_cselect_b32 s57, s56, {OOB:#x}", f"s_cselect_b32 s65, s64, {OOB:#x}"])
        return G
    P.e(f"v_lshlrev_b32 v0, 7, v0\ns_mov_b32 s56, L_glu-L_pc\ns_cmp_eq_u32 s{sTC}, 0\ns_cselect_b32 s56, s56, {OOB:#x}\ns_mov_b32 s55, 8")
    P.e(f"s_mov_b32 s66, {OOB:#x}")
    P.e(f"s_cmp_lt_u32 s{sTC}, 4\ns_cselect_b32 s60, s{KS}, s{VS}\ns_cselect_b32 s61, s{KS+1}, s{VS+1}\ns_mov_b32 s62, 0x200000\ns_mov_b32 s63, 0x20000")
    P.e(f"s_and_b32 s64, s{sTC}, 3\ns_lshl_b32 s64, s64, 15\ns_add_u32 s64, s64, s50\ns_and_b32 s65, s{sR}, 3\ns_cmp_eq_u32 s65, 0\ns_cselect_b32 s64, s64, {OOB:#x}")
    P.e("L_kloop:")
    P.loop_begin(8)
    for st in range(4):
        G = kstep(st)
        if st == 3: G.put(86, ["s_sub_u32 s55, s55, 1", "s_cmp_lg_u32 s55, 0"])
        G.emit(P)
    if stamps:
        P.e(f"s_memtime s[70:71]\ns_sub_u32 m0, 40, s55\ns_waitcnt lgkmcnt(0)\nv_writelane_b32 v{VST}, s70, m0\ns_cmp_lg_u32 s55, 0")
    P.e("s_cbranch_scc1 L_kloop")
    P.loop_end()
    stamp("kloop")
    def kvdma(z, dyn=False, tag=None, slot=None, lo=0):
        isv = z % 2
        kw = dict(tag=tag or ('Z', z), slot=slot or z_rng(z))
        g = []
        if dyn: g.append(("s_add_u32 s88, s86, s91", {}))
        for cb in range(4):
            m0 = f"s_add_u32 m0, s88, {lo + cb*4096 - 64*cb}" if dyn else f"s_add_u32 m0, s91, {z_base(z) + cb*4096 - 64*cb}"
            g += [(m0, {}), (f"buffer_load_dwordx4 v{VDV if isv else VDK}, {R(VS if isv else KS)}, s51 offen offset:{64*cb} lds", kw)]
        if isv: g.append(("s_add_u32 s51, s51, 0x4000", {}))
        return g
    def zadv(): return [("s_add_u32 s86, s86, 0x4000", {}), (f"s_cmp_eq_u32 s86, {LDS_BYTES}", {}), ("s_cselect_b32 s86, 0, s86", {})]
    P.e("L_glu:\ns_waitcnt vmcnt(0) lgkmcnt(0)\ns_barrier\ns_mov_b32 s51, s50")
    P.e(f"s_lshr_b32 s54, s{sJ}, 1\ns_mul_i32 s54, s54, 7\ns_lshl_b32 s55, s59, 2\ns_add_u32 s55, s55, s54")
    def ktoff(dst, ktreg):
        P.e(f"s_lshr_b32 s56, {ktreg}, 1\ns_lshl_b32 s56, s56, 18\ns_and_b32 s57, {ktreg}, 1\ns_lshl_b32 s57, s57, 11\ns_add_u32 s{dst}, s56, s57\ns_add_u32 s{dst}, s{dst}, {H_OFF:#x}")
    kvg = groups([x for z in range(8) for x in kvdma(z)])
    for p in range(3):
        ktoff(83+p, "s55"); P.e("s_add_u32 s55, s55, 1")
        emit_list(kvg.pop(0))
    P.e("s_add_u32 s54, s54, 3"); ktoff(87, "s54")
    P.e("s_lshl_b32 s56, s59, 3\ns_add_u32 s87, s87, s56")
    P.e(f"s_mov_b32 s54, {NLOG2E:#x}\ns_mov_b32 s55, {NLOG2E:#x}\ns_mov_b32 s56, 1.0\ns_mov_b32 s57, 1.0")
    HT = WR
    def glu(t, mt, dst, e):
        g = GA + (t*4+mt)*4; u = UA + (t*4+mt)*4
        s1 = [f"v_pk_mul_f32 v[{e}:{e+1}], v[{g}:{g+1}], s[54:55]", f"v_pk_mul_f32 v[{e+2}:{e+3}], v[{g+2}:{g+3}], s[54:55]"]
        s1 += [f"v_accvgpr_read_b32 v{e+4+i}, a{u+i}" for i in range(4)]
        s2 = [f"v_exp_f32 v{e+i}, v{e+i}" for i in range(4)]
        s3 = [f"v_pk_add_f32 v[{e}:{e+1}], v[{e}:{e+1}], s[56:57]", f"v_pk_add_f32 v[{e+2}:{e+3}], v[{e+2}:{e+3}], s[56:57]"]
        s4 = [f"v_rcp_f32 v{e+i}, v{e+i}" for i in range(4)]
        s5 = [f"v_pk_mul_f32 v[{e}:{e+1}], v[{e}:{e+1}], v[{e+4}:{e+5}]", f"v_pk_mul_f32 v[{e+2}:{e+3}], v[{e+2}:{e+3}], v[{e+6}:{e+7}]"]
        s6 = [f"v_cvt_pk_bf16_f32 v{dst}, v{e}, v{e+1}", f"v_cvt_pk_bf16_f32 v{dst+1}, v{e+2}, v{e+3}"]
        return [s1, s2, s3, s4, s5, s6]
    n = 0
    hst = []
    units = [(p, mt) for p in (2, 1, 0, 3) for mt in range(4)]
    for un, (p, mt) in enumerate(units):
        ts = [2*p, 2*p+1] if p < 3 else [6]
        dst = GA + (ts[0]*4+mt)*4
        stages = [glu(t, mt, dst + 2*i, HT + ((2*un+i) % 4) * 8) for i, t in enumerate(ts)]
        for s_ in range(6):
            for sg in stages:
                for x in sg[s_]: P.e(x)
            if s_ in (0, 1, 3, 4) and kvg: emit_list(kvg.pop(0))
            elif s_ == 2 and hst and not kvg: P.e(hst.pop(0), tag='Hst')
        vh = VH0 if mt < 2 else VH1
        if p < 3: hst.append(f"buffer_store_dwordx4 v[{dst}:{dst+3}], v{vh}, {R(WS)}, s{83+p} offen offset:{(mt&1)*1024} sc1")
        else: hst.append(f"buffer_store_dwordx2 v[{dst}:{dst+1}], v{vh}, {R(WS)}, s87 offen offset:{(mt&1)*1024} sc1")
    stamp("glu")
    P.e(f"s_mov_b32 s54, {QSCALE:#x}\ns_mov_b32 s55, {QSCALE:#x}")
    for qt in range(2):
        for t in range(8):
            e = HT + ((qt*8+t) % 4) * 8
            d = QF + (qt*8+t)*4
            if hst and (qt*8+t) % 2 == 0: P.e(hst.pop(0), tag='Hst')
            for i in range(2):
                src = QA + (t*4 + 2*qt + i)*4
                for k in range(4): P.e(f"v_accvgpr_read_b32 v{e+4*i+k}, a{src+k}")
            for k in range(4): P.e(f"v_pk_mul_f32 v[{e+2*k}:{e+2*k+1}], v[{e+2*k}:{e+2*k+1}], s[54:55]")
            for k in range(4): P.e(f"v_cvt_pk_bf16_f32 v{d+k}, v{e+2*k}, v{e+2*k+1}")
            if t > 0 or qt > 0:
                pd = d - 4
                P.e(f"v_permlane16_swap_b32 v{pd}, v{pd+2}\nv_permlane16_swap_b32 v{pd+1}, v{pd+3}")
    assert not kvg and not hst, (len(kvg), len(hst))
    pd = QF + 15*4
    P.e(f"v_permlane16_swap_b32 v{pd}, v{pd+2}\nv_permlane16_swap_b32 v{pd+1}, v{pd+3}")
    stamp("qconv")
    P.e("L_att_entry:")
    P.e(f"v_and_b32 v24, 31, v{VLN}\nv_lshrrev_b32 v25, 5, v{VLN}\nv_bfe_u32 v26, v{VLN}, 2, 2")
    P.e(f"v_xor_b32 v27, v26, v25\nv_lshlrev_b32 v24, 6, v24\nv_lshl_add_u32 v{AK0}, v27, 4, v24\nv_xor_b32 v{AK1}, 32, v{AK0}")
    P.e("s_barrier", needs=[('Z', 0), ('Z', 1)])
    ringpos = [0]
    def kread(sub, t, tag):
        r = KVR + (ringpos[0] % 8)*4; ringpos[0] += 1
        return r, [(f"ds_read_b128 a[{r}:{r+3}], v{AK0 if t % 2 == 0 else AK1} offset:{(t//2)*4096 + sub*2048}", dict(tag=tag))]
    def vread(sub, ks, dt, tag):
        r = KVR + (ringpos[0] % 8)*4; ringpos[0] += 1
        off = dt*4096 + sub*2048 + ks*1024
        return r, [(f"ds_read_b64_tr_b16 a[{r}:{r+1}], v{AV} offset:{off}", dict(tag=tag)),
                   (f"ds_read_b64_tr_b16 a[{r+2}:{r+3}], v{AV} offset:{off+512}", dict(tag=tag))]
    def S(buf, qt): return SB + (buf*2+qt)*16
    def PR(buf, qt): return PB + (buf*2+qt)*8
    def seg_qk(sub, tag, czero=False):
        frs = []
        for t in range(8):
            r, rd = kread(sub, t, tag)
            ms = []
            for qt in range(2):
                s = S(sub, qt); q = QF + (qt*8+t)*4
                c = f"v[{s}:{s+15}]" if t > 0 else ("0" if czero else f"v[{NM+qt*16}:{NM+qt*16+15}]")
                ms.append(f"v_mfma_f32_32x32x16_bf16 v[{s}:{s+15}], a[{r}:{r+3}], v[{q}:{q+3}], {c}")
            frs.append((rd, ms))
        return frs
    def seg_pv(sub, tag):
        frs = []
        for ks in range(2):
            for dt in range(4):
                r, rd = vread(sub, ks, dt, tag)
                ms = []
                for qt in range(2):
                    o = QA + (qt*4+dt)*16; p = PR(sub, qt) + ks*4
                    ms.append(f"v_mfma_f32_32x32x16_bf16 a[{o}:{o+15}], a[{r}:{r+3}], v[{p}:{p+3}], a[{o}:{o+15}]")
                frs.append((rd, ms))
        return frs
    elems = [(qt, i) for i in range(16) for qt in range(2)]
    def smE(buf, n): qt, i = elems[n]; return [f"v_exp_f32 v{S(buf,qt)+i}, v{S(buf,qt)+i}"]
    def smM(buf, n): qt, i = elems[n]; return [f"v_add_f32 v{S(buf,qt)+i}, v{S(buf,qt)+i}, v{NM+qt*16}"]
    def smAC(buf, n):
        qt, i = elems[n]
        o = [f"v_add_f32 v{LN0+qt*2+(i&1)}, v{LN0+qt*2+(i&1)}, v{S(buf,qt)+i}"]
        if i % 2 == 1: o.append(f"v_cvt_pk_bf16_f32 v{PR(buf,qt)+i//2}, v{S(buf,qt)+i-1}, v{S(buf,qt)+i}")
        return o
    def sm_wrap(G, buf):
        for g in range(4):
            if g < 2: G.put(g, smE(buf, 30+g))
            G.put(g, smAC(buf, 28+g))
    def sm_steady(G, buf, g0):
        for n in range(32):
            if g0 + n < G.n: G.put(g0 + n, smE(buf, n))
            if g0 + n + 2 < G.n: G.put(g0 + n + 2, smAC(buf, n))
    def sm_dense(G, buf, g0, g1, nE, nA, sub_m=False):
        L = nE + 3
        for k in range(L):
            g = g0 + k * (g1 - g0) // L
            if sub_m and k < 32: G.put(g, smM(buf, k))
            if sub_m and k == L - 1:
                for kk in range(L, 32): G.put(g, smM(buf, kk))
            if 1 <= k <= nE: G.put(g, smE(buf, k-1))
            if k >= 3 and k-3 < nA: G.put(g, smAC(buf, k-3))
    ALEAD = 4
    def build(segs, nxt):
        frs = [f for s in segs for f in s]
        allr = frs + nxt
        G = Gaps([m for rd, ms in frs for m in ms], True)
        for n in range(len(frs)):
            if n + ALEAD < len(allr):
                r = allr[n+ALEAD][0]
                G.put(2*n, r[0])
                if len(r) > 1: G.put(2*n+1, r[1])
            G.resv[2*n+1] = 1
        return G
    qk0 = seg_qk(0, ('Z', 0), czero=True); qk1 = seg_qk(1, ('Z', 0)); pvf = seg_pv(0, ('Z', 1))
    for n in range(ALEAD): emit_list(qk0[n][0])
    P.e(f"v_mov_b32 v{PB}, 0\nv_mov_b32 v{PB+1}, 0\nv_mov_b32 v{PB+2}, 0\nv_mov_b32 v{PB+3}, 0")
    P.e("v_lshl_add_u32 v26, v25, 2, v26\nv_lshlrev_b32 v26, 6, v26")
    for i in range(8): P.e(f"v_mfma_f32_32x32x16_bf16 a[{16*i}:{16*i+15}], v[{PB}:{PB+3}], v[{PB}:{PB+3}], 0")
    G = build([qk0], qk1)
    VP8, VP4 = TMP+6, TMP+7
    misc = [f"v_bfe_u32 v27, v{VLN}, 4, 1", "v_lshl_add_u32 v26, v27, 5, v26", f"v_and_b32 v27, 3, v{VLN}", "v_lshl_add_u32 v26, v27, 3, v26",
            f"v_add_u32 v{AV}, {z_base(1)}, v26", f"v_lshlrev_b32 v{VP4}, 2, v27", f"v_and_b32 v27, 7, v{VLN}", f"v_lshlrev_b32 v{VP8}, 2, v27"]
    misc += [f"v_mov_b32 v{LN0+i}, 0" for i in range(4)]
    misc += [f"s_lshl_b32 s54, s{sR}, 2", f"s_add_u32 s54, s54, s{sQ}", "s_lshl_b32 s54, s54, 7", f"s_add_u32 s85, s54, {FL_H:#x}", f"s_add_u32 s89, s54, {FL_O:#x}",
             f"s_lshl_b32 s55, s{sTC}, 2", "s_add_u32 s83, s85, s55", "s_add_u32 s84, s89, s55"]
    misc += [f"v_lshrrev_b32 v0, 1, v{VLN}", "v_lshlrev_b32 v0, 11, v0", f"v_and_b32 v27, 1, v{VLN}", "v_lshl_add_u32 v0, v27, 7, v0"]
    left = G.stream(misc, 0, 16); emit_later = left
    G.emit(P)
    emit_list(emit_later)
    VXS = 4
    for sl in range(4):
        P.e(f"s_add_u32 s54, s{sQ}, {sl}\ns_and_b32 s55, s54, 1\ns_bfe_u32 s54, s54, 0x10001\ns_lshl_b32 s54, s54, 12\ns_lshl_b32 s55, s55, 10\ns_add_u32 s54, s54, s55")
        P.e(f"v_add_u32 v{VXS+sl}, s54, v{VH0}")
    P.e(f"s_and_b32 s54, s{sR}, 3\ns_lshl_b32 s55, s{sW}, 2\ns_add_u32 s54, s54, s55\ns_lshl_b32 s54, s54, 15\ns_lshl_b32 s55, s{sTC}, 8\ns_add_u32 s54, s54, s55")
    P.e(f"v_add_u32 v0, s54, v0\nv_mov_b32 v27, {OOB:#x}\nv_cmp_gt_u32 vcc, 32, v{VLN}\ns_mov_b32 s59, s52\ns_mov_b32 s57, s53\nv_cndmask_b32 v0, v27, v0, vcc")
    P.e(f"s_lshl_b32 s87, s{sR}, 3\ns_add_u32 s87, s87, s{sTC}\ns_mul_i32 s80, s{sQ}, {14*0x40000:#x}\ns_add_u32 s80, s80, {H_OFF:#x}")
    P.e(f"s_mov_b32 s86, {z_base(8)}\ns_mov_b32 s93, {(-131072) & 0xffffffff:#x}\ns_mov_b32 s94, 0x8000\ns_mov_b32 s58, s52")
    stamp("a_qk0")
    P.e("s_cmp_lg_u32 s95, 0\ns_cbranch_scc1 L_havemax")
    for qt in range(2): P.e(f"v_max3_f32 v{MX+qt}, v{S(0,qt)}, v{S(0,qt)+1}, v{S(0,qt)+2}")
    for i in range(3, 15, 2):
        for qt in range(2): P.e(f"v_max3_f32 v{MX+qt}, v{MX+qt}, v{S(0,qt)+i}, v{S(0,qt)+i+1}")
    for qt in range(2): P.e(f"v_max_f32 v{MX+qt}, v{MX+qt}, v{S(0,qt)+15}")
    for qt in range(2): P.e(f"v_mov_b32 v{TMP+qt}, v{MX+qt}")
    for qt in range(2): P.e(f"v_permlane32_swap_b32 v{MX+qt}, v{TMP+qt}")
    for qt in range(2): P.e(f"v_max_f32 v{MX+qt}, v{MX+qt}, v{TMP+qt}")
    P.e("L_havemax:")
    for qt in range(2):
        for i in range(16): P.e(f"v_sub_f32 v{NM+qt*16+i}, 0, v{MX+qt}")
    stamp("a_max")
    G = build([qk1], pvf)
    sm_dense(G, 0, 0, 16, 30, 28, sub_m=True)
    G.put(2*(8-ALEAD)-1, ("s_barrier", dict(needs=[('Z', 2)])))
    G.put(10, f"v_add_u32 v{AK0}, 0x8000, v{AK0}"); G.put(12, f"v_add_u32 v{AK1}, 0x8000, v{AK1}")
    G.emit(P)
    def p2dma(z, dyn=False, tag=None, slot=None, lo=0):
        s = z - 16
        kw = dict(tag=tag or ('Z', z), slot=slot or z_rng(z))
        g = [("s_add_u32 s88, s86, s92", {})] if dyn else []
        for b in range(4):
            m0 = f"s_add_u32 m0, s88, {lo + b*1024}" if dyn else f"s_add_u32 m0, s92, {z_base(z) + b*1024}"
            g += [(m0, {}), (f"buffer_load_dwordx4 v{VD+b}, {R(WD if s < 14 else WO)}, s58 offen lds", kw)]
        g.append(("s_mov_b32 s58, s53", {}) if s == 13 else ("s_add_u32 s58, s58, 0x20000", {}))
        return g
    def att_iter(i0, kv):
        ringpos[0] = 16
        I = lambda k: i0 + k
        tV = lambda k: ('Z', 2*I(k)-1); tK = lambda k: ('Z', 2*I(k))
        segs = [seg_pv(0, tV), seg_qk(0, tK), seg_pv(1, tV), seg_qk(1, tK)]
        G = build(segs, seg_pv(0, lambda k: ('Z', 2*I(k)+1)))
        sm_wrap(G, 0); sm_steady(G, 1, 2); sm_steady(G, 0, 34)
        bg = 2*(32-ALEAD)-1
        G.put(bg, ("s_barrier", dict(needs=lambda k: [('Z', 2*I(k)+1), 'Hst'] + ([('Z', 2*I(k)+2)] if I(k) < 7 else []))))
        G.put(42, [f"s_cmp_eq_u32 s56, {1 if kv else 3}", "s_cselect_b32 s55, s93, s94"])
        G.put(50, f"v_add_u32 v{AV}, {'s94' if kv else 's55'}, v{AV}")
        G.put(58, f"v_add_u32 v{AK0}, {'s55' if kv else 's94'}, v{AK0}"); G.put(60, f"v_add_u32 v{AK1}, {'s55' if kv else 's94'}, v{AK1}")
        fn = kvdma if kv else p2dma
        zs = [lambda k: 2*I(k)+6, lambda k: 2*I(k)+7]
        d0 = fn(8 if kv else 16, True, lambda k: ('Z', zs[0](k)), lambda k: z_rng(zs[0](k)))
        d1 = fn(9 if kv else 17, True, lambda k: ('Z', zs[1](k)), lambda k: z_rng(zs[1](k)), 16384)[1:]
        G.put(46, [("s_add_u32 s86, s86, 0x8000", {}), (f"s_cmp_eq_u32 s86, {LDS_BYTES}", {})]); G.salu[46].append(("s_cselect_b32 s86, 0, s86", {}))
        if kv:
            G.put(bg+2, f"buffer_store_dword v{VNON}, v{VF}, {R(WS)}, s83 offen sc1")
            pf = [(f"buffer_load_dword v{VPOLL}, v0, {R(WD)}, s59 offen{NTP}", dict(dummy=True)), ("s_add_u32 s59, s59, 0x80000", {})]
            if not opt.get('pfwo'): pf += [(f"buffer_load_dword v{TMP}, v0, {R(WO)}, s57 offen{NTP}", dict(dummy=True)), ("s_add_u32 s57, s57, 0x80000", {})]
        else:
            G.put(bg+2, f"buffer_load_dword v{VPOLL}, v{VP8}, {R(WS)}, s85 offen sc1")
            pf = [(f"buffer_load_dword v{TMP}, v{TMP+1}, s[4:7], s59 offen", dict(dummy=True)), (f"s_mov_b32 s59, {OOB:#x}", {})]
        G.spread(d0 + d1 + pf, 0, 44 if kv else 41)
        G.put(62, ["s_sub_u32 s56, s56, 1", "s_cmp_lg_u32 s56, 0"])
        return G
    for nm, i0, cnt, kv in (("A", 1, 4, True), ("B", 5, 3, False)):
        if nm == "B":
            P.e(f"v_lshlrev_b32 v{TMP+1}, 7, v{VLN}\ns_lshl_b32 s59, s{sW}, 13\ns_add_u32 s59, s59, L_p2mid-L_pc\ns_cmp_eq_u32 s{sTC}, 0\ns_cselect_b32 s59, s59, {OOB:#x}")
        stamp("a_pre" + nm)
        P.e(f"s_mov_b32 s56, {cnt}\nL_att{nm}:")
        P.loop_begin(cnt)
        att_iter(i0, kv).emit(P)
        P.e(f"s_cbranch_scc1 L_att{nm}")
        P.loop_end()
    stamp("a_B")
    XS2 = [48, 144, 80, 112]
    def xset(s): return 208 if s == 29 else XS2[s % 4]
    def x2load(s):
        b = xset(s)
        ops = []
        for kp in range(2):
            for sl in range(4):
                r = b + (kp*4 + sl)*4
                ops.append((f"buffer_load_dwordx4 v[{r}:{r+3}], v{VXS+sl}, {R(WS)}, s80 offen offset:{kp*2048}", {}))
        if s == 13: ops += [(f"s_lshl_b32 s80, s{sQ}, 22", {}), (f"s_add_u32 s80, s80, {O_OFF:#x}", {})]
        else: ops.append(("s_add_u32 s80, s80, 0x40000", {}))
        return ops
    spin = []
    def pollchk(name, voff, soff):
        spin.append(f"L_spin_{name}:\nbuffer_load_dword v{VPOLL},v{voff},{R(WS)},{soff} offen sc1\ns_waitcnt vmcnt(0)\nv_cmp_ne_u32 vcc,s{sN},v{VPOLL}\n"
                    f"s_add_u32 s100,s100,1\ns_cmp_gt_u32 s100,{SPIN_MAX}\ns_cbranch_scc1 L_ok_{name}\ns_nop 4\n"
                    f"s_cbranch_vccnz L_spin_{name}\ns_branch L_ok_{name}")
        return [(f"v_cmp_ne_u32 vcc, s{sN}, v{VPOLL}", {}), (f"s_cbranch_vccnz L_spin_{name}", {}), (f"L_ok_{name}:", {})]
    ringpos[0] = 16
    G = build([seg_pv(0, ('Z', 15)), seg_pv(1, ('Z', 15))], [])
    sm_wrap(G, 0); sm_dense(G, 1, 2, 22, 32, 32)
    chk = pollchk("h", VP8, "s85")
    G.put(0, chk[0]); G.salu[2] += chk[1:]
    G.spread(x2load(0) + x2load(1), 3, 31)
    g15 = 21
    CHK = TMP
    G.put(g15 - 3, [f"v_mov_b32 v{CHK+2}, {f32(2.0**40):#x}", f"v_mov_b32 v{CHK+3}, {z_base(14)}"])
    chkops = [f"v_add_f32 v{LN0}, v{LN0}, v{LN0+1}", f"v_add_f32 v{LN0+2}, v{LN0+2}, v{LN0+3}",
              f"v_add_f32 v{CHK+1}, v{LN0}, v{LN0+2}", f"v_mov_b32 v{LN0+1}, v{LN0}", f"v_mov_b32 v{LN0+3}, v{LN0+2}",
              f"v_cmp_nlt_f32 vcc, v{CHK+1}, v{CHK+2}",
              (f"v_permlane32_swap_b32 v{LN0}, v{LN0+1}", {}, 1), f"v_permlane32_swap_b32 v{LN0+2}, v{LN0+3}"]
    left = G.stream(chkops, g15 + 1, g15 + 4); assert not left
    G.salu[g15 + 4] += [("s_cmp_lg_u64 vcc, 0", {}), ("s_cselect_b32 s54, 1, 0", {})]
    G.put(g15 + 5, [f"v_mov_b32 v{CHK}, s54", f"v_add_f32 v{LN0}, v{LN0}, v{LN0+1}", f"v_add_f32 v{LN0+2}, v{LN0+2}, v{LN0+3}",
                    f"v_add_u32 v{CHK+1}, s91, v{CHK+3}"])
    G.put(g15 + 6, f"ds_write_b32 v{CHK+1}, v{CHK}")
    G.put(g15 + 6, [f"v_rcp_f32 v{LN0}, v{LN0}", f"v_rcp_f32 v{LN0+2}, v{LN0+2}"])
    G.salu[g15 + 7] += [("s_waitcnt lgkmcnt(0)", {}), ("s_barrier", dict(needs=[('Z', 16)]))]
    for w in range(4): G.put(g15 + 8, f"ds_read_b32 v{CHK+w if w < 3 else CHK+4}, v{CHK+3} offset:{w*1024}")
    WR2, LEAD2 = 176, 4
    def w2read(s, f):
        kp, t = f // 8, f % 8
        r = WR2 + (f % 8)*4
        tag = ('Z', 16+s)
        return [(f"ds_read_b64_tr_b16 v[{r}:{r+1}], v{AW+t} offset:{kp*8192}", dict(tag=tag)),
                (f"ds_read_b64_tr_b16 v[{r+2}:{r+3}], v{AW+t} offset:{kp*8192+4096}", dict(tag=tag))]
    for f in range(LEAD2): G.put(g15 + 9 + f // 2, w2read(0, f))
    sc = [f"s_lshl_b32 s54, s{sJ}, 19", f"s_add_u32 s54, s54, {O_OFF:#x}", "s_add_u32 s55, s54, 0x40000", "s_add_u32 s56, s54, 0x1000", "s_add_u32 s57, s55, 0x1000"]
    G.emit(P)
    P.e(f"v_or3_b32 v{CHK}, v{CHK}, v{CHK+1}, v{CHK+2}\nv_or_b32 v{CHK}, v{CHK}, v{CHK+4}")
    P.e(f"v_readfirstlane_b32 s54, v{CHK}")
    P.e("s_andn2_b32 s54, s54, s95\ns_cbranch_scc1 L_fallback")
    stamp("attn")
    BA, SA = 128, 0
    OT = 208
    emit_list(sc)
    P.e(f"s_mul_i32 s86, s87, 196608\ns_mul_i32 s82, s{sW}, 12288\ns_add_u32 s86, s86, s82")
    for sl, dst in ((1, 93), (2, 94), (3, 81)):
        P.e(f"s_add_u32 s82, s{sQ}, {sl}\ns_and_b32 s82, s82, 3\ns_mul_i32 s82, s82, 49152\ns_add_u32 s{dst}, s86, s82\ns_add_u32 s{dst}, s{dst}, {(sl-1)*4096 + EXB_OFF:#x}")
    P.e(f"s_mul_i32 s82, s{sQ}, 49152\ns_add_u32 s82, s82, s86")
    P.e(f"s_lshl_b32 s87, s87, 7\ns_lshl_b32 s83, s{sQ}, 2\ns_add_u32 s83, s83, s87\ns_mov_b32 s59, {NLOG2E:#x}")
    P.e(f"v_lshlrev_b32 v{VPF}, 7, v{VLN}\ns_lshl_b32 s72, s{sR}, 15\ns_lshl_b32 s73, s{sTC}, 12\ns_add_u32 s72, s72, s73\nv_add_u32 v{VPF}, s72, v{VPF}")
    P.e(f"s_and_b32 s72, s{sR}, 3\ns_lshl_b32 s72, s72, 15\ns_lshl_b32 s73, s{sW}, 17\ns_add_u32 s72, s72, s73\nv_subrev_u32 v0, s73, v0")
    P.e(f"s_cmp_eq_u32 s{sW}, 0\ns_cselect_b64 vcc, -1, 0\ns_cselect_b32 s96, s{WS}, s{WO}\ns_cselect_b32 s97, s{WS+1}, s{WO+1}\ns_cselect_b32 s98, s{WS+2}, s{WO+2}")
    P.e(f"v_cndmask_b32 v{VPF}, v0, v{VPF}, vcc\ns_cselect_b32 s73, 0x40000, s66\ns_cmp_eq_u32 s{sW}, 1\ns_cselect_b32 s73, 0x20000, s73")
    P.e(f"v_mov_b32 v{VPD}, {OOB:#x}\nv_cmp_gt_u32 vcc, 32, v{VLN}\ns_cmp_lt_u32 s{sW}, 2\ns_cselect_b32 s98, s98, 0\nv_cndmask_b32 v{VPF}, v{VPD}, v{VPF}, vcc")
    WB = {1: 93, 2: 94, 3: 81}
    oops = []
    n = 0
    for qt in range(2):
        for dt in range(4):
            for u in range(2):
                e = OT + (n % 4)*8; d = OT + 32 + (n % 4)*4; n += 1
                o = QA + (qt*4+dt)*16
                src = [o + 4*u + k for k in range(4)] + [o + 4*u + 8 + k for k in range(4)]
                oops += [f"v_accvgpr_read_b32 v{e+k}, a{src[k]}" for k in range(8)]
                oops += [f"v_mul_f32 v{e+k}, v{e+k}, v{LN0+qt*2}" for k in range(8)]
                oops += [f"v_cvt_pk_bf16_f32 v{d+k}, v{e+2*k}, v{e+2*k+1}" for k in range(4)]
                oops.append((f"buffer_store_dwordx4 v[{d}:{d+3}], v{VO}, {R(WS)}, s{54 + (dt >> 1) + 2*qt} offen offset:{u*512 + (dt&1)*2048} sc1", dict(tag='Ost')))
    pcount = [0]
    def piece(accb, sl, i, tag, tmp, pk):
        n = pcount[0]; pcount[0] += 1
        e = tmp + (n % 2)*8; d = pk + (n % 2)*4
        src = accb + sl*32 + i*8
        ops = [f"v_accvgpr_read_b32 v{e+k}, a{src+k}" for k in range(8)]
        ops += [f"v_cvt_pk_bf16_f32 v{d+k}, v{e+2*k}, v{e+2*k+1}" for k in range(4)]
        ops.append((f"buffer_store_dwordx4 v[{d}:{d+3}], v{VL16}, {R(WS)}, s{WB[sl]} offen offset:{i*1024} sc1", dict(tag=tag)))
        return ops
    def limit(ops, nst):
        c = 0
        for i, x in enumerate(ops):
            if isinstance(x, tuple) and x[0].startswith('buffer_store'):
                c += 1
                if c > nst: return ops[:i], ops[i:]
        return ops, []
    pend = list(oops)
    state = {}
    WLEAD = 6
    SO, SBP = opt.get('so', 10), opt.get('sbp', 24)
    prev_vm = -3
    tx = lambda x: x[0] if isinstance(x, tuple) else x
    def mfma2(accb, s, kp, t, wr, kw0):
        out = []
        for sl in range(4):
            a = accb + (sl*8+t)*4
            xr = xset(s) + (kp*4+sl)*4
            c = "0" if (s in (0, 14) and kp == 0) else f"a[{a}:{a+3}]"
            out.append((f"v_mfma_f32_16x16x32_bf16 a[{a}:{a+3}], v[{wr}:{wr+3}], v[{xr}:{xr+3}], {c}", kw0 if sl == 0 else {}))
        return out
    win = [(st, kp, t) for p in range(4) for st in range(26, 30) for kp in range(2) for t in (2*p, 2*p+1)]
    def wwread(n):
        st, kp, t = win[n]
        r = WR2 + (n % 8)*4
        off = (st-26)*16384 + kp*8192
        tag = ('Z', 16+st)
        return [(f"ds_read_b64_tr_b16 v[{r}:{r+1}], v{AW+t} offset:{off}", dict(tag=tag)),
                (f"ds_read_b64_tr_b16 v[{r+2}:{r+3}], v{AW+t} offset:{off+4096}", dict(tag=tag))]
    for s in range(26):
        accb = BA if s < 14 else SA
        mf = []
        for f in range(16):
            kw = {}
            if f == 0: kw = dict(rdx=f"v[{xset(s)}:{xset(s)+31}]")
            elif f % 2 == 1 and f < 15:
                w2 = WR2 + ((f+1) % 8)*4; kw = dict(rdx=f"v[{w2}:{w2+3}]")
            mf += mfma2(accb, s, f // 8, f % 8, WR2 + (f % 8)*4, kw)
        G = Gaps(mf, False)
        G.aa = True; G.vmgap = 2; G.prev_vm = prev_vm
        for f in range(1, 16, 2): G.resv[4*f-1] = 1
        G.resv[63] = 1
        for f in range(16):
            ff = f + LEAD2
            rd = w2read(s, ff) if ff < 16 else (w2read(s+1, ff-16) if s < 25 else wwread(ff-16))
            G.put(4*f, rd[0]); G.put(4*f+2, rd[1])
        bg = 4*(16-LEAD2) - 1
        needs = [('Z', 16+s+1)] if s < 25 else [('Z', z) for z in range(42, 46)]
        if s == state.get('oflag'): needs.append('Ost')
        if s == state.get('bflag'): needs.append('Bst')
        G.put(bg, ("s_barrier", dict(needs=needs)))
        if s == state.get('oflag'): G.put(bg+2, f"buffer_store_dword v{VNON}, v{VF}, {R(WS)}, s84 offen sc1")
        if s == state.get('bflag'):
            G.put(bg-2, f"s_add_u32 s86, s83, {FL_BP:#x}")
            G.put(bg+2, f"buffer_store_dword v{VNON}, v{VF}, {R(WS)}, s86 offen sc1")
            for k, r in enumerate((93, 94, 81)): G.put(bg+6+4*k, f"s_add_u32 s{r}, s{r}, {EXS_OFF-EXB_OFF:#x}")
        d = (z_base(16+s+1) - z_base(16+s)) & 0xffffffff
        for t in range(8): G.put(4*(8+t-LEAD2)+3 - (1 if G.resv[4*(8+t-LEAD2)+3] else 0), f"v_add_u32 v{AW+t}, {d:#x}, v{AW+t}")
        g_first = 0
        if s == SO: G.put(1, f"buffer_load_dword v{VPOLL}, v{VP8}, {R(WS)}, s89 offen sc1"); g_first = 2
        if s == SBP: G.put(1, f"buffer_load_dword v{VPOLL}, v{VP4}, {R(WS)}, s54 offen sc1"); g_first = 2
        if s == SBP - 1: G.put(41, f"s_add_u32 s54, s87, {FL_BP:#x}")
        if s == SO + 1:
            c = pollchk("o", VP8, "s89")
            G.put(1, c[0]); G.salu[5] += c[1:]; g_first = 6
        xl = x2load(s+3)
        if s == 0: xl = x2load(2) + xl[:4]
        if s == 1: xl = x2load(3)[4:] + xl
        if s == 24: xl = xl + x2load(28)[:4]
        if s == 25: xl = xl[4:] + x2load(29)
        if s == 0: state['wq'] = groups([x for z in range(22, 46) for x in p2dma(z)])
        rate = opt.get('wrate') or {0: 0, 1: 0, 2: 0, 3: 4, 4: 4, 5: 4, 6: 4}
        npc = rate.get(s, 6 if 7 <= s <= 13 else 4 if 14 <= s <= 19 else 5) if opt.get('relief') else 4
        dg = state['wq'][:npc]; state['wq'] = state['wq'][npc:]
        xg = groups(xl)
        mix = []
        while dg or xg:
            for _ in range(2 if len(xg) >= 2*len(dg) else 1):
                if xg: mix += xg.pop(0)
            if dg: mix += dg.pop(0)
        if opt.get('pf2') and s < 25:
            xs = s + 5
            xo = None if xs in (14, 15) or xs > 29 else (f"s80+{(xs - (s+3 if s > 1 else (2 if s == 0 else 3)))}")
            state.setdefault('pfl', []).append((s, xs))
            base_x = (H_OFF, 14) if xs < 14 else (O_OFF, 16)
            okx = xs <= 29 and xs not in (14, 15)
            okw = 0 <= s - 6 < 16 and opt.get('pfwo')
            pre = []
            pre.append((f"s_mul_i32 s74, s{sQ}, {base_x[1]*0x40000:#x}", {}))
            pre.append((f"s_add_u32 s74, s74, {base_x[0] + (xs if xs < 14 else xs - 14)*0x40000 if okx else OOB:#x}", {}))
            pre.append((f"s_add_u32 s75, s53, {(s-6)*0x20000 if okw else OOB:#x}", {}))
            G.put(g_first, pre[:2]); G.put(g_first + 1, pre[2:])
            G.put(g_first + 3, [f"s_cmp_eq_u32 s{sW}, 0", "s_cselect_b32 s72, s74, s75"])
            mix = mix + [(f"buffer_load_dword v{VPD}, v{VPF}, s[96:99], s72 offen", dict(dummy=True))]
        G.spread(mix, g_first, 62)
        if s == 14: pend += [x for sl in (1, 2, 3) for i in range(4) for x in piece(BA, sl, i, 'Bst', 208, 224)]
        had = bool(pend)
        if pend:
            nst = opt.get('nst', 3) if s < 14 else opt.get('nstb', 2)
            for half in range(nst):
                now, later = limit(pend, 1)
                left = G.stream(now, half * 64 // nst, (half + 1) * 64 // nst - (1 if half == nst - 1 else 0))
                pend = left + later
        if had and not pend:
            if s < 14: state['oflag'] = s + 1
            else: state['bflag'] = s + 1
        prev_vm = G.last_vm()
        G.emit(P)
        if s == 9: P.e("L_p2mid:")
        if s in (3, 8, 13, 18, 25): stamp(f"p2_{s}")
    assert not state['wq'], len(state['wq'])
    assert not pend and state['oflag'] < SO and state['bflag'] < SBP, (state['oflag'], state['bflag'])
    mf = []
    for n, (st, kp, t) in enumerate(win):
        kw = {}
        if n < 16 and n % 4 == 0: kw = dict(rdx=f"v[{xset(st)}:{xset(st)+31}]")
        elif n % 2 == 1 and n < 63:
            w2 = WR2 + ((n+1) % 8)*4; kw = dict(rdx=f"v[{w2}:{w2+3}]")
        mf += mfma2(SA, st, kp, t, WR2 + (n % 8)*4, kw)
    G = Gaps(mf, False)
    G.aa = True; G.vmgap = 4; G.prev_vm = prev_vm
    for n in range(1, 64): G.resv[4*n-1] = 1 if (n % 2 == 1 or (n < 16 and n % 4 == 0)) else 0
    for n in range(64 - LEAD2):
        rd = wwread(n + LEAD2)
        G.put(4*n, rd[0]); G.put(4*n+2, rd[1])
    c = pollchk("bp", VP4, "s54")
    G.put(1, c[0]); G.salu[5] += c[1:]
    BL = 160
    gl = [(f"s_add_u32 s86, s82, {EXB_OFF:#x}", {})]
    for k in range(12):
        if k and k % 4 == 0: gl.append(("s_add_u32 s86, s86, 0x1000", {}))
        gl.append((f"buffer_load_dwordx4 a[{BL+4*k}:{BL+4*k+3}], v{VL16}, {R(WS)}, s86 offen offset:{(k%4)*1024} sc1", {}))
    G.spread(gl, 6, 62)
    XRES, xa = 8, 24
    VF2 = 0
    pre = [f"v_mov_b32 v{VF2}, v{VF}", f"v_and_b32 v{xa}, 15, v{VLN}", f"v_lshlrev_b32 v{xa}, 11, v{xa}", f"v_lshrrev_b32 v{xa+1}, 4, v{VLN}", f"v_lshl_add_u32 v{xa+2}, v{xa+1}, 3, v{xa}",
           (f"s_lshl_b32 s54, s{sR}, 19", {}), (f"s_lshl_b32 s55, s{sW}, 17", {}), ("s_add_u32 s54, s54, s55", {}),
           (f"s_lshl_b32 s55, s{sQ}, 15", {}), ("s_add_u32 s54, s54, s55", {}), (f"s_lshl_b32 s55, s{sTC}, 8", {}), ("s_add_u32 s54, s54, s55", {}),
           f"v_and_b32 v{xa+3}, 1, v{xa+1}", f"v_lshl_add_u32 v{xa}, v{xa+3}, 5, v{xa}", f"v_lshrrev_b32 v{xa+1}, 1, v{xa+1}", f"v_lshl_add_u32 v{xa}, v{xa+1}, 4, v{xa}",
           f"v_sub_u32 v{VP4}, s{sQ}, v{VLN}", f"v_and_b32 v{VP4}, 3, v{VP4}", f"v_lshlrev_b32 v{VP4}, 2, v{VP4}"]
    left = G.stream(pre, 6, 64); assert not left
    def spiece(sl, i):
        n = pcount[0]; pcount[0] += 1
        e = 240 + (n % 2)*8; d = (4, 32)[n % 2]
        src = SA + sl*32 + i*8
        ops = [f"v_accvgpr_read_b32 v{e+k}, a{src+k}" for k in range(8)]
        ops += [f"v_cvt_pk_bf16_f32 v{d+k}, v{e+2*k}, v{e+2*k+1}" for k in range(4)]
        ops.append((f"buffer_store_dwordx4 v[{d}:{d+3}], v{VL16}, {R(WS)}, s{WB[sl]} offen offset:{i*1024} sc1", dict(tag='Sst')))
        return ops
    xr = [(f"buffer_load_dwordx2 v[{XRES+2*t}:{XRES+2*t+1}], v{xa+2}, {R(XS)}, s54 offen offset:{32*t}", {}) for t in range(8)]
    for p in range(3):
        left = G.stream([x for sl in (1, 2, 3) for x in spiece(sl, p)], 64*(p+1) + 3, 64*(p+2) - 1); assert not left
        left = G.stream(xr[3*p:3*p+3], 64*(p+1), 64*(p+2) - 1); assert not left
    G.emit(P)
    P.info = dict(oflag=state['oflag'], bflag=state['bflag'])
    stamp("p2_S")
    emit_list([x for sl in (1, 2, 3) for x in spiece(sl, 3)])
    P.e(f"s_add_u32 s86, s83, {FL_SP:#x}\ns_add_u32 s55, s87, {FL_SP:#x}")
    stamp("s_issued")
    GV, SV, XF, LZ, TT = 48, 80, 112, 144, 192
    for k in range(32): P.e(f"v_accvgpr_read_b32 v{GV+k}, a{BA+k}")
    for k in range(24): P.e(f"v_accvgpr_read_b32 v{LZ+k}, a{BL+k}")
    P.e("s_barrier", needs=['Sst'])
    P.e(f"buffer_store_dword v{VNON}, v{VF2}, {R(WS)}, s86 offen sc1")
    stamp("s_pub")
    for k in range(24, 48): P.e(f"v_accvgpr_read_b32 v{LZ+k}, a{BL+k}")
    def addpart(dst, l):
        for k in range(16):
            t = TT + (k % 4)*2
            P.e(f"v_lshlrev_b32 v{t}, 16, v{l+k}\nv_and_b32 v{t+1}, s90, v{l+k}\nv_pk_add_f32 v[{dst+2*k}:{dst+2*k+1}], v[{dst+2*k}:{dst+2*k+1}], v[{t}:{t+1}]")
    for j in range(3): addpart(GV, LZ + 16*j)
    P.e(f"s_mov_b32 s56, 14\ns_mov_b32 s57, 0\ns_mov_b32 s91, 0\ns_mov_b32 s88, 1\ns_add_u32 s82, s82, {EXS_OFF:#x}")
    def take(tagn):
        P.e(f"v_cmp_eq_u32 vcc, s{sN}, v{VPOLL}")
        P.e("s_and_b32 s57, vcc_lo, s56\ns_andn2_b32 s56, s56, s57")
        for sl in (1, 2, 3):
            P.e(f"s_bitcmp1_b32 s57, {sl}\ns_cbranch_scc0 L_nl{tagn}_{sl}\ns_add_u32 s86, s82, {(sl-1)*4096}")
            for i in range(4):
                l = LZ + (sl-1)*16 + 4*i
                P.e(f"buffer_load_dwordx4 v[{l}:{l+3}], v{VL16}, {R(WS)}, s86 offen offset:{i*1024} sc1")
            P.e(f"L_nl{tagn}_{sl}:")
    P.e(f"buffer_load_dword v{VPOLL}, v{VP4}, {R(WS)}, s55 offen sc1")
    for k in range(32): P.e(f"v_accvgpr_read_b32 v{SV+k}, a{SA+k}")
    for k in range(16): P.e(f"v_lshlrev_b32 v{XF+2*k}, 16, v{XRES+k}\nv_and_b32 v{XF+2*k+1}, s90, v{XRES+k}")
    P.e("s_waitcnt vmcnt(0)")
    take("a")
    P.e("s_mov_b32 s58, s59\ns_mov_b32 s92, 1.0\ns_mov_b32 s93, 1.0")
    for k0 in range(0, 32, 8):
        t = TT
        for k in range(0, 8, 2): P.e(f"v_pk_mul_f32 v[{t+k}:{t+k+1}], v[{GV+k0+k}:{GV+k0+k+1}], s[58:59]")
        for k in range(8): P.e(f"v_exp_f32 v{t+k}, v{t+k}")
        for k in range(0, 8, 2): P.e(f"v_pk_add_f32 v[{t+k}:{t+k+1}], v[{t+k}:{t+k+1}], s[92:93]")
        for k in range(8): P.e(f"v_rcp_f32 v{t+k}, v{t+k}")
        for k in range(0, 8, 2): P.e(f"v_pk_mul_f32 v[{GV+k0+k}:{GV+k0+k+1}], v[{GV+k0+k}:{GV+k0+k+1}], v[{t+k}:{t+k+1}]")
    stamp("g_done")
    P.e("L_fin_loop:")
    P.e("s_cmp_eq_u32 s56, 0\ns_cbranch_scc1 L_fin_nopoll")
    P.e(f"buffer_load_dword v{VPOLL}, v{VP4}, {R(WS)}, s55 offen sc1")
    P.e("L_fin_nopoll:")
    P.e("s_waitcnt vmcnt(0)\ns_or_b32 s91, s91, s57")
    for sl in (1, 2, 3):
        P.e(f"s_lshl_b32 s86, s88, 1\ns_and_b32 s86, s86, s91\ns_andn2_b32 s86, s86, s88\ns_bitcmp1_b32 s86, {sl}\ns_cbranch_scc0 L_na_{sl}")
        addpart(SV, LZ + (sl-1)*16)
        P.e(f"s_bitset1_b32 s88, {sl}\nL_na_{sl}:")
    take("b")
    P.e(f"s_add_u32 s100, s100, 1\ns_cmp_gt_u32 s100, {SPIN_MAX}\ns_cbranch_scc1 L_fin_done")
    P.e("s_cmp_lg_u32 s88, 15\ns_cbranch_scc1 L_fin_loop")
    P.e("L_fin_done:")
    stamp("s_flag")
    for p in range(4):
        for k in range(4*p, 4*p+4):
            P.e(f"v_pk_fma_f32 v[{SV+2*k}:{SV+2*k+1}], v[{SV+2*k}:{SV+2*k+1}], v[{GV+2*k}:{GV+2*k+1}], v[{XF+2*k}:{XF+2*k+1}]")
        for k in range(4*p, 4*p+4): P.e(f"v_cvt_pk_bf16_f32 v{TT+k}, v{SV+2*k}, v{SV+2*k+1}")
        q = TT + 4*p
        P.e(f"v_permlane16_swap_b32 v{q}, v{q+2}\nv_permlane16_swap_b32 v{q+1}, v{q+3}")
        P.e(f"buffer_store_dwordx4 v[{q}:{q+3}], v{xa}, {R(OUT)}, s54 offen offset:{64*p}" + {0: "", 1: " sc1", 2: " nt", 3: " sc0 sc1"}[opt.get('outf', 1)])
    if stamps:
        P.e("s_waitcnt vmcnt(0)")
        stamp("end")
        P.e(f"s_memrealtime s[70:71]\ns_waitcnt lgkmcnt(0)\nv_writelane_b32 v{VST}, s70, 31\nv_writelane_b32 v{VST}, s100, 29")
        P.e(f"s_lshl_b32 s58, s2, 2\ns_add_u32 s58, s58, s{sW}\ns_lshl_b32 s58, s58, 8\ns_add_u32 s58, s58, {TS_OFF:#x}\nv_lshlrev_b32 v24, 2, v{VLN}")
        P.e(f"buffer_store_dword v{VST}, v24, {R(WS)}, s58 offen")
    P.e("L_end:")
    P.e("s_endpgm")
    P.solve_waits()
    errs = P.check_dma()
    assert not errs, "\n".join(errs[:10])
    P.solve_hazards()
    Fb = Prog()
    Fb.e("L_fallback:")
    Fb.e("s_waitcnt vmcnt(0) lgkmcnt(0)\ns_barrier")
    Fb.e(f"v_and_b32 v24, 31, v{VLN}\nv_lshrrev_b32 v25, 5, v{VLN}\nv_bfe_u32 v26, v{VLN}, 2, 2")
    Fb.e(f"v_xor_b32 v27, v26, v25\nv_lshlrev_b32 v24, 6, v24\nv_lshl_add_u32 v{AK0}, v27, 4, v24\nv_xor_b32 v{AK1}, 32, v{AK0}")
    Fb.e(f"v_mov_b32 v{MX}, 0xff800000\nv_mov_b32 v{MX+1}, 0xff800000\ns_mov_b32 s51, s50\ns_mov_b32 s55, 8")
    Fb.e("L_fb_loop:")
    for cb in range(4):
        Fb.e(f"s_add_u32 m0, s91, {cb*4096 - 64*cb}\nbuffer_load_dwordx4 v{VDK}, {R(KS)}, s51 offen offset:{64*cb} lds")
    Fb.e("s_add_u32 s51, s51, 0x4000\ns_waitcnt vmcnt(0)\ns_barrier")
    for sub in range(2):
        for t in range(8):
            r = KVR + t*4
            Fb.e(f"ds_read_b128 a[{r}:{r+3}], v{AK0 if t % 2 == 0 else AK1} offset:{(t//2)*4096 + sub*2048}")
        for t in range(8):
            r = KVR + t*4
            for qt in range(2):
                s = S(sub, qt); q = QF + (qt*8+t)*4
                Fb.e(f"v_mfma_f32_32x32x16_bf16 v[{s}:{s+15}], a[{r}:{r+3}], v[{q}:{q+3}], " + (f"v[{s}:{s+15}]" if t else "0"))
        Fb.e("s_nop 7")
    for sub in range(2):
        for qt in range(2):
            s = S(sub, qt)
            for i in range(0, 16, 2): Fb.e(f"v_max3_f32 v{MX+qt}, v{MX+qt}, v{s+i}, v{s+i+1}")
    Fb.e("s_barrier\ns_sub_u32 s55, s55, 1\ns_cmp_lg_u32 s55, 0\ns_cbranch_scc1 L_fb_loop")
    for qt in range(2): Fb.e(f"v_mov_b32 v{TMP+qt}, v{MX+qt}")
    for qt in range(2): Fb.e(f"v_permlane32_swap_b32 v{MX+qt}, v{TMP+qt}")
    for qt in range(2): Fb.e(f"v_max_f32 v{MX+qt}, v{MX+qt}, v{TMP+qt}")
    Fb.e("s_mov_b32 s51, s50")
    for z in range(8):
        for x in kvdma(z): Fb.e(x[0])
    Fb.e("s_mov_b32 s95, 1\ns_waitcnt vmcnt(0)\ns_branch L_att_entry")
    Fb.solve_waits(); Fb.solve_hazards()
    text = P.text() + "\n" + "\n".join(spin) + "\n" + Fb.text() + "\nL_code_end:"
    return text, kd(name, 512, 256, 102), P
```
